```python
import torch

def _softmax(x, axis=-1):
    return torch.softmax(x, dim=axis)

def _gelu(x):
    return torch.nn.functional.gelu(x, approximate='tanh')

def _silu(x):
    return torch.nn.functional.silu(x)

def _sigmoid(x):
    return torch.sigmoid(x)

def _layernorm(x, axis=-1, eps=1e-05):
    m = x.mean(dim=axis, keepdim=True)
    v = x.var(dim=axis, keepdim=True, unbiased=False)
    return (x - m) / torch.sqrt(v + eps)

def _scatter_add(tgt, idx, src, axis=0):
    return tgt.clone().index_add_(axis, idx, src)

def _segment_sum(src, seg, n):
    out = torch.zeros((n,) + src.shape[1:], dtype=src.dtype)
    return out.index_add_(0, seg, src)

def _pad(x, pw):
    flat = tuple((v for pair in reversed(pw) for v in pair))
    return torch.nn.functional.pad(x, flat)
kernel_name = 'gated_mix__grouped_kv_mqa__mixer_gmlp__prompt'

def setup_inputs():

    _w = lambda a: (lambda t: t.to(torch.bfloat16) if t.is_floating_point() else t)(torch.as_tensor(a))

    def _A_setup():
        B, S, D, H = (1, 2048, 640, 32)
        Dh = D // H
        return {'x': _w((lambda *s: torch.randn(*s, dtype=torch.bfloat16) * 0.05)(B, S, D)), 'wq': _w((lambda *s: torch.randn(*s, dtype=torch.bfloat16) * 1.6)(D, H * Dh)), 'wk': _w((lambda *s: torch.randn(*s, dtype=torch.bfloat16) * 1.6)(D, Dh)), 'wv': _w((lambda *s: torch.randn(*s, dtype=torch.bfloat16) * 0.2)(D, Dh)), 'wo': _w((lambda *s: torch.randn(*s, dtype=torch.bfloat16) * 0.2)(H * Dh, D))}
    _A_in = _A_setup()

    def _B_setup():
        B, S, D, F = (1, 2048, 640, 1728)
        Fh = F // 2
        return {'x': _w((lambda *s: torch.randn(*s, dtype=torch.bfloat16) * 0.05)(B, S, D)), 'w_in': _w((lambda *s: torch.randn(*s, dtype=torch.bfloat16) * 0.8)(D, 2 * Fh)), 'w_sp': _w(0.01 * (lambda *s: torch.randn(*s, dtype=torch.bfloat16) * 0.8)(S, S)), 'b_sp': _w(1.0 + 0.01 * (lambda *s: torch.randn(*s, dtype=torch.bfloat16) * 0.05)(S)), 'w_out': _w((lambda *s: torch.randn(*s, dtype=torch.bfloat16) * 0.05)(Fh, D))}
    _B_in = _B_setup()
    return {'A_x': _A_in['x'], 'A_wq': _A_in['wq'], 'A_wk': _A_in['wk'], 'A_wv': _A_in['wv'], 'A_wo': _A_in['wo'], 'B_x': _B_in['x'], 'B_w_in': _B_in['w_in'], 'B_w_sp': _B_in['w_sp'], 'B_b_sp': _B_in['b_sp'], 'B_w_out': _B_in['w_out'], 'gate_w': _w((lambda *s: torch.randn(*s, dtype=torch.bfloat16) * 0.05)(640) * 16.0)}

def reference(A_x, A_wq, A_wk, A_wv, A_wo, B_x, B_w_in, B_w_sp, B_b_sp, B_w_out, gate_w):

    def _A_ref(x, wq, wk, wv, wo):
        B, S, D = x.shape
        H = 32
        Dh = D // H
        q = (lambda x, *d: x.permute(*d))((x @ wq).reshape(B, S, H, Dh), 0, 2, 1, 3)
        k = x @ wk
        v = x @ wv
        scores = torch.einsum('bhqd,bkd->bhqk', q, k) * Dh ** (-0.5)
        p = _softmax(scores, axis=-1)
        o = torch.einsum('bhqk,bkd->bhqd', p, v)
        return (lambda x, *d: x.permute(*d))(o, 0, 2, 1, 3).reshape(B, S, H * Dh) @ wo

    def _B_ref(x, w_in, w_sp, b_sp, w_out):
        B, S, D = x.shape
        F = w_in.shape[-1]
        Fh = F // 2
        z = _gelu(torch.einsum('bsd,df->bsf', x, w_in))
        z1 = z[..., :Fh].clone()
        z2 = _layernorm(z[..., Fh:], axis=-1)
        g = torch.einsum('ts,bsf->btf', w_sp, z2) + b_sp[None, :, None]
        return torch.einsum('bsf,fd->bsd', z1 * g, w_out)
    x = A_x
    g = _sigmoid((x * gate_w).sum(-1, keepdims=True))
    a = _A_ref(x, A_wq, A_wk, A_wv, A_wo)
    b = _B_ref(x, B_w_in, B_w_sp, B_b_sp, B_w_out)
    return g * a + (1 - g) * b
```

```python
import struct

def f32(x):
    return "0x%08x" % struct.unpack("<I", struct.pack("<f", x))[0]

class Asm:
    def __init__(self):
        self.lines = []
        self.nlabel = 0
    def __call__(self, s):
        for l in s.strip("\n").split("\n"):
            self.lines.append("    " + l.strip())
    def label(self, name):
        self.lines.append(name + ":")
    def raw(self, s):
        self.lines.append(s)
    def comment(self, s):
        self.lines.append("    ; " + s)
    def newlabel(self, p="L"):
        self.nlabel += 1
        return f"{p}_{self.nlabel}"
    def text(self):
        return "\n".join(self.lines) + "\n"

def vr(a, n):
    return f"v[{a}:{a+n-1}]" if n > 1 else f"v{a}"
def sr(a, n):
    return f"s[{a}:{a+n-1}]" if n > 1 else f"s{a}"

def kernel_begin(A, name):
    A.raw(f".globl {name}")
    A.raw(".p2align 8")
    A.raw(f".type {name},@function")
    A.label(name)

def kernel_desc(name, vgpr, sgpr=102, accum=None):
    if accum is None:
        accum = (vgpr + 3) // 4 * 4
    return f""".p2align 6
.amdhsa_kernel {name}
  .amdhsa_next_free_vgpr {vgpr}
  .amdhsa_next_free_sgpr {sgpr}
  .amdhsa_accum_offset {accum}
  .amdhsa_group_segment_fixed_size 0
  .amdhsa_kernarg_size 112
  .amdhsa_user_sgpr_count 2
  .amdhsa_user_sgpr_kernarg_segment_ptr 1
  .amdhsa_system_sgpr_workgroup_id_x 1
.end_amdhsa_kernel
"""

def srd(A, d, base, nbytes):
    A(f"s_mov_b32 s{d}, s{base}")
    A(f"s_mov_b32 s{d+1}, s{base+1}")
    A(f"s_mov_b32 s{d+2}, {nbytes}")
    A(f"s_mov_b32 s{d+3}, 0x00020000")

Q_OFF    = 0x000000
KV_OFF   = 0x280000
GATE_OFF = 0x2C0000
STAT_OFF = 0x2D0000
Z1_OFF   = 0x300000
Z2_OFF   = 0x680000
ACT_OFF  = 0xA00000
WS_BYTES = 0x1000000
```

```python
from asmlib import *
import math

R = 6
NST = 10
SLOT = 20480
GATE_LDS = R * SLOT
TR_LDS = GATE_LDS + 1280
TR_STRIDE = 304
K1_LDS = TR_LDS + 4 * 32 * TR_STRIDE

ACC = 16
WF = 96
XR = 136
DMA_A = 232
DMA_LD = 242
V_TRB = 247
V_XOFF = 249
V_GACC = 250
V_GADDR = 251
V_GF = 252
V_LANE = 1
V_S = 2
V_H = 3
V_PF = 15

QSCALE = (20.0 ** -0.5) * math.log2(math.e)
C1 = -2.0 * math.sqrt(2.0 / math.pi) * math.log2(math.e)
C2 = C1 * 0.044715

def issue_group(A, st, first=False):
    out = []
    slot = st % R
    for jj in range(4):
        x = XR + slot * 16 + jj * 4
        out.append(f"buffer_load_dwordx4 {vr(x,4)}, v{V_XOFF}, s[28:31], 0 offen offset:{(st*4+jj)*32}")
    for i in range(5):
        a = DMA_A + 2 * i
        s = ""
        if not first:
            s += f"v_mad_u64_u32 {vr(a,2)}, s[50:51], v{DMA_LD+i}, 64, {vr(a,2)}\n"
        s += f"s_add_u32 m0, s52, {slot*SLOT + i*1024}\n"
        s += "s_nop 0\n"
        s += f"global_load_lds_dwordx4 {vr(a,2)}, off"
        out.append(s)
    return out

def tr_reads(j, mt):
    st, jj = divmod(j, 4)
    slot = st % R
    base = V_TRB + slot // 3
    d = WF + (j % 2) * 20 + mt * 4
    o = (slot % 3) * SLOT + jj * 16 * 320 + mt * 64
    return [f"ds_read_b64_tr_b16 {vr(d,2)}, v{base} offset:{o}",
            f"ds_read_b64_tr_b16 {vr(d+2,2)}, v{base} offset:{o + 4*320}"]

def mainloop(A, gate):
    nout = (R - 1) * 9
    A(f"s_waitcnt vmcnt({nout})")
    A("s_barrier")
    for mt in range(5):
        for r in tr_reads(0, mt): A(r)
    if gate:
        A(f"ds_read_b128 {vr(V_GF,4)}, v{V_GADDR} offset:0")
    for j in range(40):
        st, jj = divmod(j, 4)
        slot = st % R
        xb = XR + slot * 16 + jj * 4
        pend = []
        if jj == 0 and st >= 1 and st - 1 + R < NST:
            pend = issue_group(A, st - 1 + R)
        last = (j == 39)
        boundary = (jj == 3 and not last)
        g = 1 if gate else 0
        for mt in range(5):
            wf = WF + (j % 2) * 20 + mt * 4
            acc = ACC + mt * 16
            if boundary or last:
                if mt < 2 or last:
                    A(f"s_waitcnt lgkmcnt({(4-mt)*2 + g})")
            else:
                A(f"s_waitcnt lgkmcnt({8 + g})" if mt < 4 or not gate else "s_waitcnt lgkmcnt(8)")
            c = "0" if j == 0 else vr(acc, 16)
            A(f"v_mfma_f32_32x32x16_bf16 {vr(acc,16)}, {vr(wf,4)}, {vr(xb,4)}, {c}")
            if boundary:
                if mt == 1:
                    hi = min(st - 1 + R, NST - 1) if st >= 1 else R - 1
                    n = max(0, hi - (st + 1)) * 9
                    A(f"s_waitcnt vmcnt({n}) lgkmcnt(0)")
                    A("s_barrier")
                    for m2 in (0, 1):
                        for r in tr_reads(j + 1, m2): A(r)
                elif mt >= 2:
                    for r in tr_reads(j + 1, mt): A(r)
            elif not last:
                for r in tr_reads(j + 1, mt): A(r)
            if gate and mt == 4:
                if last:
                    A("s_waitcnt lgkmcnt(0)")
                for e in range(4):
                    A(f"v_dot2c_f32_bf16 v{V_GACC}, v{xb+e}, v{V_GF+e}")
                if not last:
                    A(f"ds_read_b128 {vr(V_GF,4)}, v{V_GADDR} offset:{(j+1)*32}")
            if pend:
                for _ in range(2):
                    if pend: A(pend.pop(0))
        assert not pend

def gelu_pairs(A, regs, tmp, vc1, vc2):
    B = 4
    for b0 in range(0, len(regs), B):
        bt = regs[b0:b0 + B]
        for i, r in enumerate(bt):
            A(f"v_pk_mul_f32 {vr(tmp+2*i,2)}, {vr(r,2)}, {vr(r,2)}")
        for i, r in enumerate(bt):
            A(f"v_pk_fma_f32 {vr(tmp+2*i,2)}, {vr(tmp+2*i,2)}, {vr(vc2,2)}, {vr(vc1,2)}")
        for i, r in enumerate(bt):
            A(f"v_pk_mul_f32 {vr(tmp+2*i,2)}, {vr(tmp+2*i,2)}, {vr(r,2)}")
        for i, r in enumerate(bt):
            A(f"v_exp_f32 v{tmp+2*i}, v{tmp+2*i}")
            A(f"v_exp_f32 v{tmp+2*i+1}, v{tmp+2*i+1}")
        if len(bt) == 1: A("s_nop 0")
        for i, r in enumerate(bt):
            A(f"v_pk_add_f32 {vr(tmp+2*i,2)}, {vr(tmp+2*i,2)}, 1.0 op_sel_hi:[1,0]")
        for i, r in enumerate(bt):
            A(f"v_rcp_f32 v{tmp+2*i}, v{tmp+2*i}")
            A(f"v_rcp_f32 v{tmp+2*i+1}, v{tmp+2*i+1}")
        if len(bt) == 1: A("s_nop 0")
        for i, r in enumerate(bt):
            A(f"v_pk_mul_f32 {vr(r,2)}, {vr(r,2)}, {vr(tmp+2*i,2)}")

def pack8(A, dst, src):
    for i in range(4):
        A(f"v_cvt_pk_bf16_f32 v{dst+i}, v{src+2*i}, v{src+2*i+1}")

def pi_perm(A, dst, src, t1):
    A(f"v_and_b32 v{dst}, 0x13, v{src}")
    A(f"v_and_b32 v{t1}, 4, v{src}")
    A(f"v_lshl_or_b32 v{dst}, v{t1}, 1, v{dst}")
    A(f"v_and_b32 v{t1}, 8, v{src}")
    A(f"v_lshrrev_b32 v{t1}, 1, v{t1}")
    A(f"v_or_b32 v{dst}, v{dst}, v{t1}")

def gen_k1(A, name, text_end_label):
    kernel_begin(A, name)
    A("s_cmp_ge_u32 s2, 256")
    A("s_cbranch_scc1 K1_END")
    A("s_load_dwordx8 s[8:15], s[0:1], 0")
    A("s_load_dwordx2 s[16:17], s[0:1], 48")
    A("s_load_dwordx2 s[18:19], s[0:1], 80")
    A("s_load_dwordx4 s[20:23], s[0:1], 96")
    A("s_getpc_b64 s[56:57]")
    A.label("K1_PC")
    A(f"s_mov_b32 s58, {text_end_label}-K1_PC")
    A("s_mov_b32 s59, 0x00020000")
    A(f"v_lshlrev_b32 v4, 6, v0")
    A(f"buffer_load_dword v{V_PF}, v4, s[56:59], 0 offen")
    A("s_and_b32 s3, s2, 7")
    A("s_lshr_b32 s4, s2, 3")
    A("s_and_b32 s24, s3, 1")
    A("s_lshl_b32 s24, s24, 3")
    A("s_and_b32 s5, s4, 7")
    A("s_add_u32 s24, s24, s5")
    A("s_lshr_b32 s25, s3, 1")
    A("s_lshl_b32 s25, s25, 2")
    A("s_lshr_b32 s5, s4, 3")
    A("s_add_u32 s25, s25, s5")
    A("v_lshrrev_b32 v5, 6, v0")
    A(f"v_and_b32 v{V_LANE}, 63, v0")
    A("v_readfirstlane_b32 s26, v5")
    A(f"v_and_b32 v{V_S}, 31, v0")
    A(f"v_bfe_u32 v{V_H}, v0, 5, 1")
    A("s_lshl_b32 s27, s24, 2")
    A("s_add_u32 s27, s27, s26")
    A("s_lshl_b32 s5, s27, 5")
    A(f"v_add_u32 v6, s5, v{V_S}")
    A("s_movk_i32 s5, 1280")
    A(f"v_mul_lo_u32 v{V_XOFF}, v6, s5")
    A(f"v_lshl_add_u32 v{V_XOFF}, v{V_H}, 4, v{V_XOFF}")
    A("s_mul_i32 s52, s26, 5120")
    A("s_waitcnt lgkmcnt(0)")
    srd(A, 28, 8, 2048 * 1280)
    srd(A, 32, 22, WS_BYTES)
    srd(A, 36, 18, 1280)
    A("s_mul_i32 s5, s24, 6")
    A("s_add_u32 s5, s5, s25")
    A("s_lshl_b32 s5, s5, 2")
    A("s_add_u32 s5, s5, s26")
    A("s_lshl_b32 s5, s5, 8")
    A(f"s_add_u32 s5, s5, {STAT_OFF - 10*1024}")
    A(f"v_lshl_add_u32 v7, v{V_S}, 3, s5")
    A("v_mov_b32 v8, 0")
    A("v_mov_b32 v9, -1")
    A("s_cmp_lt_u32 s25, 10")
    A("s_cbranch_scc1 K1_NOCLR")
    A("buffer_store_dwordx2 v[8:9], v7, s[32:35], 0 offen sc1")
    A.label("K1_NOCLR")
    A("s_cmp_gt_u32 s26, 1")
    A("s_cbranch_scc1 K1_NOGATE")
    A("s_lshl_b32 s5, s26, 10")
    A(f"s_add_u32 m0, s5, {GATE_LDS}")
    A("v_lshlrev_b32 v4, 4, v0")
    A("buffer_load_dwordx4 v4, s[36:39], 0 offen lds")
    A.label("K1_NOGATE")
    g0 = issue_group(A, 0, first=True)
    for s in g0[:4]: A(s)
    A("s_cmp_ge_u32 s25, 4")
    A("s_cbranch_scc1 K1_ZBLK")
    A("s_mul_i32 s5, s25, 320")
    A("s_add_u32 s40, s10, s5")
    A("s_addc_u32 s41, s11, 0")
    A("s_movk_i32 s42, 1280")
    A("s_add_u32 s44, s40, 288")
    A("s_addc_u32 s45, s41, 0")
    A("s_add_u32 s46, s40, 304")
    A("s_addc_u32 s47, s41, 0")
    A("s_mov_b32 s48, s42")
    A("s_branch K1_PARAMS_DONE")
    A.label("K1_ZBLK")
    A("s_sub_u32 s5, s25, 4")
    A("s_mul_i32 s5, s5, 288")
    A("s_add_u32 s40, s16, s5")
    A("s_addc_u32 s41, s17, 0")
    A("s_movk_i32 s42, 3456")
    A("s_add_u32 s44, s40, 256")
    A("s_addc_u32 s45, s41, 0")
    A("s_add_u32 s46, s40, 272")
    A("s_addc_u32 s47, s41, 0")
    A("s_mov_b32 s48, s42")
    A("s_cmp_gt_u32 s25, 6")
    A("s_cbranch_scc1 K1_PARAMS_DONE")
    A("s_mov_b32 s48, 40")
    A("s_cmp_eq_u32 s25, 5")
    A("s_cbranch_scc1 K1_CB5")
    A("s_cmp_eq_u32 s25, 4")
    A("s_cselect_b32 s44, s12, s14")
    A("s_cselect_b32 s45, s13, s15")
    A("s_add_u32 s46, s44, 16")
    A("s_addc_u32 s47, s45, 0")
    A("s_branch K1_PARAMS_DONE")
    A.label("K1_CB5")
    A("s_add_u32 s44, s12, 24")
    A("s_addc_u32 s45, s13, 0")
    A("s_add_u32 s46, s14, 24")
    A("s_addc_u32 s47, s15, 0")
    A.label("K1_PARAMS_DONE")
    A("v_mov_b32 v8, s44")
    A("v_mov_b32 v9, s45")
    A("v_mov_b32 v10, s46")
    A("v_mov_b32 v11, s47")
    A("v_mov_b32 v12, s48")
    A("s_lshl_b32 s5, s26, 4")
    A("s_movk_i32 s6, 3277")
    for i in range(5):
        a = DMA_A + 2 * i
        A(f"v_add_u32 v4, {i*64}, v{V_LANE}")
        A("v_mul_u32_u24 v13, s6, v4")
        A("v_lshrrev_b32 v13, 16, v13")
        A("v_mul_u32_u24 v14, 20, v13")
        A("v_sub_u32 v4, v4, v14")
        A("v_add_u32 v13, s5, v13")
        A(f"v_mad_u64_u32 {vr(a,2)}, s[50:51], v4, 16, s[40:41]")
        A(f"v_mov_b32 v{DMA_LD+i}, s42")
        A("v_cmp_eq_u32 vcc, 18, v4")
        A("v_cmp_eq_u32 s[54:55], 19, v4")
        A("s_nop 0")
        A(f"v_cndmask_b32 v{a}, v{a}, v8, vcc")
        A(f"v_cndmask_b32 v{a+1}, v{a+1}, v9, vcc")
        A(f"v_cndmask_b32 v{DMA_LD+i}, v{DMA_LD+i}, v12, vcc")
        A(f"v_cndmask_b32 v{a}, v{a}, v10, s[54:55]")
        A(f"v_cndmask_b32 v{a+1}, v{a+1}, v11, s[54:55]")
        A(f"v_cndmask_b32 v{DMA_LD+i}, v{DMA_LD+i}, v12, s[54:55]")
        A(f"v_mad_u64_u32 {vr(a,2)}, s[50:51], v13, v{DMA_LD+i}, {vr(a,2)}")
        A(g0[4 + i])
    for st in range(1, R):
        for s in issue_group(A, st): A(s)
    A(f"v_bfe_u32 v4, v{V_LANE}, 2, 2")
    A(f"v_lshl_add_u32 v4, v{V_H}, 3, v4")
    A(f"v_mul_u32_u24 v{V_TRB}, 320, v4")
    A(f"v_bfe_u32 v4, v{V_LANE}, 4, 1")
    A(f"v_lshl_add_u32 v{V_TRB}, v4, 5, v{V_TRB}")
    A(f"v_and_b32 v4, 1, v{V_LANE}")
    A(f"v_lshl_add_u32 v{V_TRB}, v4, 4, v{V_TRB}")
    A(f"v_bfe_u32 v4, v{V_LANE}, 1, 1")
    A(f"v_lshl_add_u32 v{V_TRB}, v4, 3, v{V_TRB}")
    A(f"v_add_u32 v{V_TRB+1}, {3*SLOT}, v{V_TRB}")
    A(f"v_lshlrev_b32 v{V_GADDR}, 4, v{V_H}")
    A(f"v_add_u32 v{V_GADDR}, {GATE_LDS}, v{V_GADDR}")
    A(f"v_mov_b32 v{V_GACC}, 0")
    A("s_cmp_eq_u32 s25, 0")
    A("s_cbranch_scc1 K1_LOOP_GATE")
    mainloop(A, gate=False)
    A("s_branch K1_EPI")
    A.label("K1_LOOP_GATE")
    mainloop(A, gate=True)
    A("s_nop 3")
    A(f"v_mov_b32 v4, v{V_GACC}")
    A("s_nop 1")
    A(f"v_permlane32_swap_b32 v4, v{V_GACC}")
    A("s_nop 1")
    A(f"v_add_f32 v4, v4, v{V_GACC}")
    A(f"v_mul_f32 v4, {f32(-math.log2(math.e))}, v4")
    A("v_exp_f32 v4, v4")
    A("s_nop 0")
    A("v_add_f32 v4, 1.0, v4")
    A("v_rcp_f32 v4, v4")
    A("v_lshlrev_b32 v5, 2, v6")
    A(f"v_add_u32 v5, {GATE_OFF}, v5")
    A("buffer_store_dword v4, v5, s[32:35], 0 offen")
    A.label("K1_EPI")
    A("s_nop 7")
    A("s_nop 7")
    T = XR
    A("s_cmp_ge_u32 s25, 4")
    A("s_cbranch_scc1 K1_EPI_Z")
    A(f"s_mov_b32 s60, {f32(QSCALE)}")
    A(f"s_mov_b32 s61, {f32(QSCALE)}")
    A("s_mul_i32 s5, s25, 320")
    A(f"v_add_u32 v4, s5, v{V_XOFF}")
    for mt in range(5):
        for g in range(2):
            a = ACC + mt * 16 + g * 8
            d = T + ((mt * 2 + g) % 8) * 4
            for i in range(4):
                A(f"v_pk_mul_f32 {vr(a+2*i,2)}, {vr(a+2*i,2)}, s[60:61]")
            pack8(A, d, a)
            A(f"buffer_store_dwordx4 {vr(d,4)}, v4, s[32:35], 0 offen offset:{mt*64+g*32}")
    A("s_endpgm")
    A.label("K1_EPI_Z")
    A("s_cmp_lt_u32 s25, 10")
    A("s_cbranch_scc1 K1_NOSIG")
    A("s_mov_b64 exec, 1")
    A("s_lshl_b32 s5, s27, 2")
    A("v_mov_b32 v4, s5")
    A("v_mov_b32 v5, 1")
    A("global_atomic_add v4, v5, s[20:21] sc1")
    A("s_mov_b64 exec, -1")
    A.label("K1_NOSIG")
    vc1, vc2 = T, T + 2
    A(f"v_mov_b32 v{vc1}, {f32(C1)}")
    A(f"v_mov_b32 v{vc1+1}, {f32(C1)}")
    A(f"v_mov_b32 v{vc2}, {f32(C2)}")
    A(f"v_mov_b32 v{vc2+1}, {f32(C2)}")
    regs = [ACC + 2 * i for i in range(36)]
    A("s_cmp_ge_u32 s25, 10")
    A("s_cbranch_scc1 K1_EPI_Z2")
    A("s_mul_i32 s5, s27, 54")
    A("s_sub_u32 s6, s25, 4")
    A("s_mul_i32 s6, s6, 9")
    A("s_add_u32 s5, s5, s6")
    A("s_lshl_b32 s5, s5, 10")
    A(f"s_add_u32 s5, s5, {Z1_OFF}")
    A(f"v_lshl_add_u32 v4, v{V_LANE}, 4, s5")
    for G in range(9):
        gelu_pairs(A, regs[4 * G:4 * G + 4], T + 8, vc1, vc2)
        d = T + 16 + (G % 8) * 4
        pack8(A, d, ACC + 8 * G)
        if G % 4 == 0 and G > 0:
            A(f"v_add_u32 v4, 4096, v4")
        A(f"buffer_store_dwordx4 {vr(d,4)}, v4, s[32:35], 0 offen offset:{(G%4)*1024}")
    A("s_cmp_gt_u32 s25, 6")
    A("s_cbranch_scc1 K1_END")
    SP = ACC + 72
    d = T + 64
    pack8(A, d, SP)
    A("s_mul_i32 s5, s27, 2560")
    A(f"s_add_u32 s5, s5, {KV_OFF}")
    pi_perm(A, 8, V_S, 9)
    A(f"v_bfe_u32 v9, v{V_S}, 4, 1")
    A("v_mul_u32_u24 v10, 640, v9")
    A(f"v_bfe_u32 v9, v{V_S}, 3, 1")
    A("v_mul_u32_u24 v9, 320, v9")
    A("v_add_u32 v10, v10, v9")
    A(f"v_and_b32 v9, 7, v{V_S}")
    A("v_lshl_add_u32 v10, v9, 1, v10")
    A("v_add_u32 v10, s5, v10")
    A("s_cmp_eq_u32 s25, 5")
    A("s_cbranch_scc1 K1_SP5")
    A("s_cmp_eq_u32 s25, 6")
    A("s_cbranch_scc1 K1_SP6")
    A(f"v_lshl_add_u32 v9, v{V_H}, 5, v8")
    A("v_lshl_add_u32 v9, v9, 4, s5")
    A(f"buffer_store_dwordx4 {vr(d,4)}, v9, s[32:35], 0 offen")
    A("s_endpgm")
    A.label("K1_SP5")
    A("v_lshl_add_u32 v9, v8, 3, s5")
    A("s_mov_b32 exec_hi, 0")
    A(f"buffer_store_dwordx2 {vr(d+2,2)}, v9, s[32:35], 0 offen offset:1024")
    A("s_mov_b32 exec_hi, -1")
    A("s_mov_b32 exec_lo, 0")
    for e in range(4):
        op = "buffer_store_short_d16_hi" if e % 2 else "buffer_store_short"
        A(f"{op} v{d+2+e//2}, v10, s[32:35], 0 offen offset:{1280 + (16+e)*16}")
    A("s_endpgm")
    A.label("K1_SP6")
    A(f"v_lshl_add_u32 v10, v{V_H}, 6, v10")
    for e in range(8):
        op = "buffer_store_short_d16_hi" if e % 2 else "buffer_store_short"
        m = (e & 3) | ((e >> 2) << 3)
        A(f"{op} v{d+e//2}, v10, s[32:35], 0 offen offset:{1280 + m*16}")
    A("s_endpgm")
    A.label("K1_EPI_Z2")
    SUM, SQ = T + 4, T + 6
    for G in range(9):
        gelu_pairs(A, regs[4 * G:4 * G + 4], T + 8, vc1, vc2)
        for i, r in enumerate(regs[4 * G:4 * G + 4]):
            if G == 0 and i == 0:
                A(f"v_pk_mul_f32 {vr(SQ,2)}, {vr(r,2)}, {vr(r,2)}")
                A(f"v_mov_b32 v{SUM}, v{r}")
                A(f"v_mov_b32 v{SUM+1}, v{r+1}")
            else:
                A(f"v_pk_add_f32 {vr(SUM,2)}, {vr(SUM,2)}, {vr(r,2)}")
                A(f"v_pk_fma_f32 {vr(SQ,2)}, {vr(r,2)}, {vr(r,2)}, {vr(SQ,2)}")
    A("s_lshl_b32 s5, s27, 2")
    A("v_mov_b32 v4, s5")
    A("global_load_dword v5, v4, s[20:21] sc1")
    A(f"v_add_f32 v8, v{SUM}, v{SUM+1}")
    A(f"v_add_f32 v9, v{SQ}, v{SQ+1}")
    A("v_mov_b32 v10, v8")
    A("v_mov_b32 v11, v9")
    A("s_nop 1")
    A("v_permlane32_swap_b32 v8, v10")
    A("v_permlane32_swap_b32 v9, v11")
    A("s_nop 1")
    A("v_add_f32 v8, v8, v10")
    A("v_add_f32 v9, v9, v11")
    A("v_and_b32 v9, 0x7fffffff, v9")
    A("buffer_store_dwordx2 v[8:9], v7, s[32:35], 0 offen sc1")
    A("s_mul_i32 s5, s24, 24")
    A("s_add_u32 s5, s5, s26")
    A("s_lshl_b32 s5, s5, 8")
    A(f"s_add_u32 s5, s5, {STAT_OFF}")
    A(f"v_lshl_add_u32 v12, v{V_S}, 3, s5")
    A(f"v_mul_u32_u24 v13, 3072, v{V_H}")
    A("v_add_u32 v12, v12, v13")
    A("s_waitcnt vmcnt(1)")
    A.label("K1_POLL1")
    A("v_cmp_gt_u32 vcc, 6, v5")
    A("s_cbranch_vccz K1_POLL2")
    A("s_sleep 1")
    A("global_load_dword v5, v4, s[20:21] sc1")
    A("s_waitcnt vmcnt(0)")
    A("s_branch K1_POLL1")
    A.label("K1_POLL2")
    P = T + 8
    for i in range(3):
        A(f"buffer_load_dwordx2 {vr(P+2*i,2)}, v12, s[32:35], 0 offen offset:{i*1024} sc1")
    A("s_waitcnt vmcnt(0)")
    A(f"v_or3_b32 v13, v{P+1}, v{P+3}, v{P+5}")
    A("v_cmp_gt_i32 vcc, 0, v13")
    A("s_cbranch_vccnz K1_POLL2")
    A(f"v_add_f32 v8, v{P}, v{P+2}")
    A(f"v_add_f32 v9, v{P+1}, v{P+3}")
    A(f"v_add_f32 v8, v8, v{P+4}")
    A(f"v_add_f32 v9, v9, v{P+5}")
    A("v_mov_b32 v10, v8")
    A("v_mov_b32 v11, v9")
    A("s_nop 1")
    A("v_permlane32_swap_b32 v8, v10")
    A("v_permlane32_swap_b32 v9, v11")
    A("s_nop 1")
    A("v_add_f32 v8, v8, v10")
    A("v_add_f32 v9, v9, v11")
    A(f"v_mul_f32 v8, {f32(1.0/864)}, v8")
    A(f"v_mul_f32 v9, {f32(1.0/864)}, v9")
    A("v_fma_f32 v9, -v8, v8, v9")
    A("v_max_f32 v9, 0, v9")
    A(f"v_add_f32 v9, {f32(1e-5)}, v9")
    A("v_rsq_f32 v10, v9")
    A("s_nop 0")
    A("v_mul_f32 v12, v8, v10")
    A("v_sub_f32 v12, 0, v12")
    A("v_mov_b32 v11, v10")
    A("v_mov_b32 v13, v12")
    A(f"s_mul_i32 s5, s26, {32*TR_STRIDE}")
    A(f"s_add_u32 s5, s5, {TR_LDS}")
    A(f"v_mul_u32_u24 v14, {TR_STRIDE}, v{V_S}")
    A(f"v_lshl_add_u32 v14, v{V_H}, 4, v14")
    A("v_add_u32 v14, s5, v14")
    A(f"v_lshrrev_b32 v4, 4, v{V_LANE}")
    A(f"v_bfe_u32 v5, v{V_LANE}, 2, 2")
    A("v_lshl_add_u32 v5, v4, 3, v5")
    A(f"v_mul_u32_u24 v5, {TR_STRIDE}, v5")
    A(f"v_and_b32 v8, 1, v{V_LANE}")
    A("v_lshl_add_u32 v5, v8, 4, v5")
    A(f"v_bfe_u32 v8, v{V_LANE}, 1, 1")
    A("v_lshl_add_u32 v5, v8, 3, v5")
    A("v_add_u32 v5, s5, v5")
    A("v_lshrrev_b32 v8, 1, v4")
    A("v_lshlrev_b32 v8, 10, v8")
    A("v_and_b32 v9, 1, v4")
    A("v_lshl_add_u32 v8, v9, 9, v8")
    A(f"v_and_b32 v9, 15, v{V_LANE}")
    A("v_lshl_add_u32 v8, v9, 4, v8")
    A("s_lshl_b32 s6, s27, 11")
    A(f"s_add_u32 s6, s6, {Z2_OFF}")
    A("v_add_u32 v8, s6, v8")
    A("s_sub_u32 s7, s25, 10")
    A("s_mul_i32 s7, s7, 9")
    D = T + 16
    for G in range(9):
        a = ACC + 8 * G
        for i in range(4):
            A(f"v_pk_fma_f32 {vr(a+2*i,2)}, {vr(a+2*i,2)}, v[10:11], v[12:13]")
        pack8(A, D + 4 * G, a)
        A(f"ds_write_b128 v14, {vr(D+4*G,4)} offset:{G*32}")
    A("s_waitcnt lgkmcnt(0)")
    for G in range(9):
        a = ACC + 4 * G
        A(f"ds_read_b64_tr_b16 {vr(a,2)}, v5 offset:{G*32}")
        A(f"ds_read_b64_tr_b16 {vr(a+2,2)}, v5 offset:{G*32 + 4*TR_STRIDE}")
    for G in range(9):
        a = ACC + 4 * G
        A(f"s_add_u32 s5, s7, {G}")
        A("s_lshr_b32 s6, s5, 1")
        A("s_lshl_b32 s6, s6, 17")
        A("s_and_b32 s5, s5, 1")
        A("s_lshl_b32 s5, s5, 8")
        A("s_add_u32 s5, s5, s6")
        A(f"s_waitcnt lgkmcnt({min(15, (8-G)*2)})")
        A(f"buffer_store_dwordx4 {vr(a,4)}, v8, s[32:35], s5 offen")
    A.label("K1_END")
    A("s_endpgm")
```

```python
from asmlib import *
import math

K2_LDS = 163840
V_LANE, V_LM, V_H = 1, 2, 3
V_KA1, V_KA2, V_VA = 4, 5, 6
V_GA = 7
V_GB = 9
V_L16 = 11
V_T0 = 12
S = [16, 32]
O = [48, 64]
GACC = 80
GA = 144
GB = 176
KF = 208
VF = 216
QF = 232
TT = 244
V_PF = 214

SEQ_G  = "eeeBceec1eece2eceeGceecHeeceAc"
SEQ_N  = "eeeBceece1eceec2eeceeceeceAc"

def mfma32(d, a, b, c):
    return f"v_mfma_f32_32x32x16_bf16 {vr(d,16)}, {vr(a,4)}, {vr(b,4)}, {c if c == '0' else vr(c,16)}"

def qk1(sb, slot): return mfma32(sb, KF, QF + slot * 6, "0")
def qk2(sb, slot): return f"v_mfma_f32_32x32x8_bf16 {vr(sb,16)}, {vr(KF+4,2)}, {vr(QF+slot*6+4,2)}, {vr(sb,16)}"

def kv_reads_k1(blk):
    return f"ds_read_b128 {vr(KF,4)}, v{V_KA1} offset:{blk*2560}"
def kv_reads_rest(blk, vbuf):
    return "\n".join([
        "s_mov_b64 exec, s[34:35]",
        f"ds_read_b64 {vr(KF+4,2)}, v{V_KA2} offset:{blk*2560+1024}",
        "s_mov_b64 exec, s[32:33]",
        f"ds_read_b128 {vr(VF+vbuf*8,4)}, v{V_VA} offset:{blk*2560+1280}",
        f"ds_read_b128 {vr(VF+vbuf*8+4,4)}, v{V_VA} offset:{blk*2560+1920}",
        "s_mov_b64 exec, -1"])

def g_loadA(ks):
    return [f"buffer_load_dwordx4 {vr(GA+ks*8+a*4,4)}, v{V_GA+a}, s[40:43], s37 offen offset:{ks*1024}" for a in range(2)]
def g_loadB(b):
    return [f"buffer_load_dwordx4 {vr(GB+b*16+ks*4,4)}, v{V_GB+b}, s[20:23], s38 offen offset:{ks*32}" for ks in range(4)]

def phase(A, p, G):
    it, slot = divmod(p, 2)
    sc, so = S[p % 2], S[(p + 1) % 2]
    e = c = 0
    vb_prev = ((p - 1) // 2) % 2
    vb_cur = it % 2
    ks, b = p % 4, p // 4
    for ch in (SEQ_G if G else SEQ_N):
        if ch == 'e':
            A(f"v_exp_f32 v{sc+e}, v{sc+e}"); e += 1
        elif ch == 'c':
            A(f"v_cvt_pk_bf16_f32 v{sc+c}, v{sc+2*c}, v{sc+2*c+1}"); c += 1
        elif ch == 'B':
            oo = O[(p + 1) % 2]
            A(mfma32(oo, VF + vb_prev * 8 + 4, so + 4, oo))
            if p % 2 == 1:
                A("s_waitcnt lgkmcnt(0)")
        elif ch == '1':
            A(qk1(so, (p + 1) % 2))
            if p % 2 == 0:
                A(kv_reads_k1(it + 1))
        elif ch == '2':
            A(qk2(so, (p + 1) % 2))
            if p % 2 == 0:
                A(kv_reads_rest(it + 1, (it + 1) % 2))
            if G and p <= 4:
                A(f"s_waitcnt vmcnt({[10, 8, 6, 4, 4][p]})")
        elif ch == 'G':
            A(mfma32(GACC + (0 * 2 + b) * 16, GA + ks * 8, GB + b * 16 + ks * 4, GACC + (0 * 2 + b) * 16))
        elif ch == 'H':
            A(mfma32(GACC + (1 * 2 + b) * 16, GA + ks * 8 + 4, GB + b * 16 + ks * 4, GACC + (1 * 2 + b) * 16))
            if p == 3:
                for l in g_loadB(0): A(l)
            elif p >= 4:
                for l in g_loadA(p - 4): A(l)
                if p == 7:
                    for l in g_loadB(1): A(l)
        elif ch == 'A':
            oo = O[p % 2]
            A(mfma32(oo, VF + vb_cur * 8, sc, oo))
    assert e == 16 and c == 8

def mainloop(A, G, tag):
    A("s_mov_b32 s36, 0")
    A.raw(".p2align 6")
    A.label(f"K2_LOOP{tag}")
    A("s_cmp_lg_u32 s36, 1")
    A(f"s_cbranch_scc1 K2_NOB{tag}")
    if not G:
        A("s_waitcnt vmcnt(0)")
    A("s_barrier")
    A.label(f"K2_NOB{tag}")
    if G:
        A("s_add_u32 s37, s37, 4096")
        A("s_add_u32 s38, s38, 128")
        A("s_cmp_eq_u32 s36, 7")
        A(f"s_cselect_b32 s42, 0, {WS_BYTES}")
        A(f"s_cselect_b32 s22, 0, {2048*4096}")
    for p in range(8):
        phase(A, p, G)
    A(f"v_add_u32 v{V_KA1}, 10240, v{V_KA1}")
    A(f"v_add_u32 v{V_KA2}, 10240, v{V_KA2}")
    A(f"v_add_u32 v{V_VA}, 10240, v{V_VA}")
    A("s_add_u32 s36, s36, 1")
    A("s_cmp_lt_u32 s36, 8")
    A(f"s_cbranch_scc1 K2_LOOP{tag}")

def max16(A, dst, sb, init=None):
    if init is None:
        A(f"v_max3_f32 v{dst}, v{sb}, v{sb+1}, v{sb+2}")
        rest = list(range(3, 16))
    else:
        rest = list(range(0, 16))
    while len(rest) >= 2:
        A(f"v_max3_f32 v{dst}, v{dst}, v{sb+rest[0]}, v{sb+rest[1]}")
        rest = rest[2:]
    if rest:
        A(f"v_max_f32 v{dst}, v{dst}, v{sb+rest[0]}")

def set_bias(A, m, slot, t):
    q2 = QF + slot * 6 + 4
    A(f"v_mov_b32 v{t}, v{m}")
    A("s_nop 1")
    A(f"v_permlane32_swap_b32 v{t}, v{m}")
    A("s_nop 1")
    A(f"v_max_f32 v{m}, v{m}, v{t}")
    A(f"v_sub_f32 v{m}, 0, v{m}")
    A(f"v_and_b32 v{t}, 0xffff0000, v{m}")
    A(f"v_sub_f32 v{t+1}, v{m}, v{t}")
    A(f"v_and_b32 v{t+2}, 0xffff0000, v{t+1}")
    A(f"v_sub_f32 v{t+3}, v{t+1}, v{t+2}")
    A(f"v_lshrrev_b32 v{t}, 16, v{t}")
    A(f"v_or_b32 v{t}, v{t}, v{t+2}")
    A(f"v_lshrrev_b32 v{t+3}, 16, v{t+3}")
    A(f"v_cndmask_b32 v{q2}, v{q2}, v{t}, s[44:45]")
    A(f"v_cndmask_b32 v{q2+1}, v{q2+1}, v{t+3}, s[44:45]")

def gen_k2(A, name, text_end_label):
    kernel_begin(A, name)
    A("s_cmp_ge_u32 s2, 256")
    A("s_cbranch_scc1 K2_END")
    A("s_load_dwordx4 s[8:11], s[0:1], 56")
    A("s_load_dwordx2 s[12:13], s[0:1], 104")
    A("s_getpc_b64 s[56:57]")
    A.label("K2_PC")
    A(f"s_mov_b32 s58, {text_end_label}-K2_PC")
    A("s_mov_b32 s59, 0x00020000")
    A(f"v_lshlrev_b32 v{V_T0}, 6, v0")
    A(f"buffer_load_dword v{V_PF}, v{V_T0}, s[56:59], 0 offen")
    A("s_and_b32 s3, s2, 7")
    A("s_lshr_b32 s4, s2, 3")
    A("s_lshr_b32 s28, s3, 1")
    A("s_lshl_b32 s28, s28, 3")
    A("s_lshr_b32 s5, s4, 2")
    A("s_add_u32 s28, s28, s5")
    A("s_and_b32 s29, s3, 1")
    A("s_lshl_b32 s29, s29, 2")
    A("s_and_b32 s5, s4, 3")
    A("s_add_u32 s29, s29, s5")
    A(f"v_lshrrev_b32 v{V_T0+1}, 6, v0")
    A(f"v_and_b32 v{V_LANE}, 63, v0")
    A(f"v_readfirstlane_b32 s30, v{V_T0+1}")
    A(f"v_and_b32 v{V_LM}, 31, v0")
    A(f"v_bfe_u32 v{V_H}, v0, 5, 1")
    A(f"v_lshlrev_b32 v{V_L16}, 4, v{V_LANE}")
    A("s_mov_b32 s32, 0xfffff")
    A("s_mov_b32 s33, 0xfffff")
    A("s_mov_b32 s34, -1")
    A("s_mov_b32 s35, 0")
    A("s_mov_b32 s44, 0")
    A("s_mov_b32 s45, -1")
    A("s_lshr_b32 s46, s30, 2")
    A("s_and_b32 s47, s30, 1")
    A("s_bfe_u32 s48, s30, 0x10001")
    A("s_lshr_b32 s49, s30, 1")
    A("s_lshl_b32 s50, s28, 1")
    A("s_add_u32 s50, s50, s47")
    A("s_lshl_b32 s51, s29, 2")
    A("s_lshl_b32 s5, s48, 1")
    A("s_add_u32 s51, s51, s5")
    A("s_add_u32 s51, s51, s46")
    A("s_lshl_b32 s5, s50, 5")
    A(f"v_add_u32 v{V_T0}, s5, v{V_LM}")
    A("s_movk_i32 s5, 1280")
    A(f"v_mul_lo_u32 v{V_T0+1}, v{V_T0}, s5")
    A(f"v_lshl_add_u32 v{V_T0+2}, v{V_H}, 4, v{V_T0+1}")
    A(f"v_lshlrev_b32 v{V_KA2}, 3, v{V_LM}")
    A("s_mul_i32 s52, s51, 40")
    A("s_xor_b32 s5, s51, 1")
    A("s_mul_i32 s53, s5, 40")
    A("s_waitcnt lgkmcnt(0)")
    srd(A, 16, 12, WS_BYTES)
    srd(A, 40, 12, WS_BYTES)
    srd(A, 20, 8, 2048 * 4096)
    srd(A, 24, 10, 4096)
    for slot in range(2):
        q = QF + slot * 6
        A(f"buffer_load_dwordx4 {vr(q,4)}, v{V_T0+2}, s[16:19], s{52+slot} offen")
        A(f"buffer_load_dwordx2 {vr(q+4,2)}, v{V_T0+1}, s[16:19], s{52+slot} offen offset:32")
    A(f"s_mov_b32 s54, {KV_OFF}")
    A(f"buffer_load_dwordx4 {vr(KF,4)}, v{V_L16}, s[16:19], s54 offen")
    A(f"buffer_load_dwordx2 {vr(KF+4,2)}, v{V_KA2}, s[16:19], s54 offen offset:1024")
    A("s_mul_i32 s5, s46, 80")
    A("s_and_b32 s6, s30, 3")
    A("s_lshl_b32 s6, s6, 2")
    A("s_add_u32 s5, s5, s6")
    A("s_lshl_b32 s5, s5, 10")
    A(f"s_add_u32 s6, s5, {KV_OFF}")
    for Rr in range(5):
        A(f"s_add_u32 m0, s5, {Rr*16384}")
        A(f"s_add_u32 s7, s6, {Rr*16384}")
        for i in range(4):
            A(f"buffer_load_dwordx4 v{V_L16}, s[16:19], s7 offen offset:{i*1024} lds")
    A("s_lshl_b32 s5, s29, 2")
    A("s_lshl_b32 s6, s47, 1")
    A("s_add_u32 s5, s5, s6")
    A("s_lshr_b32 s6, s49, 1")
    A("s_add_u32 s60, s5, s6")
    A("s_xor_b32 s61, s60, 1")
    A("s_lshl_b32 s7, s49, 15")
    A(f"s_add_u32 s7, s7, {Z2_OFF}")
    for a in range(2):
        A(f"s_min_u32 s5, s{60+a}, 26")
        A("s_lshl_b32 s5, s5, 17")
        A("s_add_u32 s5, s5, s7")
        A(f"v_add_u32 v{V_GA+a}, s5, v{V_L16}")
    A("s_and_b32 s5, s49, 1")
    A("s_lshl_b32 s62, s28, 1")
    A("s_add_u32 s62, s62, s5")
    A("s_xor_b32 s63, s62, 1")
    A(f"v_lshlrev_b32 v{V_T0}, 12, v{V_LM}")
    A(f"v_lshl_add_u32 v{V_T0}, v{V_H}, 4, v{V_T0}")
    A("s_lshl_b32 s7, s49, 10")
    for b in range(2):
        A(f"s_lshl_b32 s5, s{62+b}, 17")
        A("s_add_u32 s5, s5, s7")
        A(f"v_add_u32 v{V_GB+b}, s5, v{V_T0}")
    A("s_mov_b32 s37, 0")
    A("s_mov_b32 s38, 0")
    A("s_cmp_eq_u32 s29, 7")
    A(f"s_cselect_b32 s42, 0, {WS_BYTES}")
    A(f"s_cselect_b32 s22, 0, {2048*4096}")
    for l in g_loadB(0): A(l)
    for ks in range(4):
        for l in g_loadA(ks): A(l)
    for l in g_loadB(1): A(l)
    A("s_mul_i32 s5, s46, 81920")
    A(f"v_add_u32 v{V_KA1}, s5, v{V_L16}")
    A(f"v_add_u32 v{V_KA2}, s5, v{V_KA2}")
    A(f"v_mul_u32_u24 v{V_VA}, 20, v{V_H}")
    A(f"v_add_u32 v{V_VA}, v{V_VA}, v{V_LM}")
    A(f"v_lshl_add_u32 v{V_VA}, v{V_VA}, 4, s5")
    for i in range(32):
        A(f"v_mov_b32 v{O[0]+i}, 0")
    for i in range(64):
        A(f"v_mov_b32 v{GACC+i}, 0")
    for i in range(16):
        A(f"v_mov_b32 v{VF+i}, 0x3f803f80")
    A("s_waitcnt vmcnt(36)")
    A(f"v_mov_b32 v{TT}, 0")
    for slot in range(2):
        q2 = QF + slot * 6 + 4
        A(f"v_cndmask_b32 v{q2}, v{q2}, v{TT}, s[44:45]")
        A(f"v_cndmask_b32 v{q2+1}, v{q2+1}, v{TT}, s[44:45]")
    A("s_nop 1")
    A(qk1(S[0], 0)); A(qk2(S[0], 0)); A(qk1(S[1], 1)); A(qk2(S[1], 1))
    A("s_nop 7")
    A(f"v_mov_b32 v{KF+4}, 0x3f803f80")
    A(f"v_mov_b32 v{KF+5}, 0x3f80")
    max16(A, TT, S[0])
    A("s_nop 3")
    max16(A, TT + 1, S[1])
    set_bias(A, TT, 0, TT + 2)
    set_bias(A, TT + 1, 1, TT + 6)
    for i in range(4):
        A(f"v_mov_b32 v{S[1]+4+i}, 0")
    A("s_waitcnt vmcnt(32)")
    A("s_barrier")
    A(kv_reads_k1(0))
    A(kv_reads_rest(0, 0))
    A("s_waitcnt lgkmcnt(0)")
    A(qk1(S[0], 0)); A(qk2(S[0], 0))
    A("s_nop 7")
    A("s_cmp_eq_u32 s29, 7")
    A("s_cbranch_scc1 K2_NOG")
    mainloop(A, True, "G")
    A("s_branch K2_EPI")
    A.label("K2_NOG")
    mainloop(A, False, "N")
    A.label("K2_EPI")
    A(mfma32(O[1], VF + 8 + 4, S[1] + 4, O[1]))
    ZF = GA
    VBS, VG1, VG2 = GA + 8, GA + 9, GA + 10
    A("s_waitcnt vmcnt(0) lgkmcnt(0)")
    A("s_mul_i32 s5, s62, 54")
    A("s_min_u32 s6, s60, 26")
    A("s_lshl_b32 s6, s6, 1")
    A("s_add_u32 s5, s5, s6")
    A("s_lshl_b32 s5, s5, 10")
    A(f"s_add_u32 s5, s5, {Z1_OFF}")
    A(f"buffer_load_dwordx4 {vr(ZF,4)}, v{V_L16}, s[16:19], s5 offen")
    A(f"buffer_load_dwordx4 {vr(ZF+4,4)}, v{V_L16}, s[16:19], s5 offen offset:1024")
    A(f"v_lshlrev_b32 v{V_T0}, 1, v{V_LM}")
    A(f"v_lshlrev_b32 v{V_T0+1}, 2, v{V_LM}")
    A("s_lshl_b32 s5, s62, 6")
    A(f"buffer_load_ushort v{VBS}, v{V_T0}, s[24:27], s5 offen")
    A("s_lshl_b32 s5, s62, 7")
    A(f"s_add_u32 s5, s5, {GATE_OFF}")
    A(f"buffer_load_dword v{VG1}, v{V_T0+1}, s[16:19], s5 offen")
    A("s_lshl_b32 s5, s50, 7")
    A(f"s_add_u32 s5, s5, {GATE_OFF}")
    A(f"buffer_load_dword v{VG2}, v{V_T0+1}, s[16:19], s5 offen")
    A("s_barrier")
    A("s_xor_b32 s5, s30, 4")
    A("s_lshl_b32 s5, s5, 12")
    A("s_add_u32 s5, s5, 98304")
    A(f"v_add_u32 v{V_T0}, s5, v{V_L16}")
    for q4 in range(4):
        A(f"ds_write_b128 v{V_T0}, {vr(O[1]+4*q4,4)} offset:{q4*1024}")
    A("s_cmp_eq_u32 s29, 7")
    A("s_cbranch_scc1 K2_NOGW")
    for sl in range(1, 4):
        A(f"s_xor_b32 s5, s30, {sl << 1}")
        A("s_mul_i32 s5, s5, 12288")
        A(f"v_add_u32 v{V_T0+sl}, s5, v{V_L16}")
        for q4 in range(4):
            A(f"ds_write_b128 v{V_T0+sl}, {vr(GACC+sl*16+4*q4,4)} offset:{(sl-1)*4096 + q4*1024}")
    A.label("K2_NOGW")
    A("s_waitcnt lgkmcnt(0)")
    A("s_barrier")
    A("s_lshl_b32 s5, s30, 12")
    A("s_add_u32 s5, s5, 98304")
    A(f"v_add_u32 v{V_T0}, s5, v{V_L16}")
    for q4 in range(4):
        A(f"ds_read_b128 {vr(O[1]+4*q4,4)}, v{V_T0} offset:{q4*1024}")
    A("s_cmp_ge_u32 s60, 27")
    A("s_cbranch_scc1 K2_OFIN")
    A("s_mul_i32 s5, s30, 12288")
    A(f"v_add_u32 v{V_T0+1}, s5, v{V_L16}")
    for i in range(12):
        A(f"ds_read_b128 {vr(GACC+16+4*i,4)}, v{V_T0+1} offset:{i*1024}")
    A("s_waitcnt vmcnt(0)")
    C, BC = TT, TT + 2
    A(f"v_sub_f32 v{C}, 1.0, v{VG1}")
    A(f"v_lshlrev_b32 v{VBS}, 16, v{VBS}")
    A(f"v_mov_b32 v{C+1}, v{C}")
    A(f"v_mul_f32 v{BC}, v{VBS}, v{C}")
    A(f"v_mov_b32 v{BC+1}, v{BC}")
    ZU = GB
    for i in range(8):
        A(f"v_lshlrev_b32 v{ZU+2*i}, 16, v{ZF+i}")
        A(f"v_and_b32 v{ZU+2*i+1}, 0xffff0000, v{ZF+i}")
    A("s_mul_i32 s5, s62, 94")
    A("s_lshl_b32 s6, s60, 1")
    A("s_add_u32 s5, s5, s6")
    A("s_lshl_b32 s5, s5, 10")
    A(f"s_add_u32 s5, s5, {ACT_OFF + 40*1024}")
    for sl in range(1, 4):
        A(f"s_waitcnt lgkmcnt({(3-sl)*4})")
        for i in range(8):
            A(f"v_pk_add_f32 {vr(GACC+2*i,2)}, {vr(GACC+2*i,2)}, {vr(GACC+sl*16+2*i,2)}")
    for i in range(8):
        A(f"v_pk_fma_f32 {vr(GACC+2*i,2)}, {vr(GACC+2*i,2)}, {vr(C,2)}, {vr(BC,2)}")
    for i in range(8):
        A(f"v_pk_mul_f32 {vr(GACC+2*i,2)}, {vr(GACC+2*i,2)}, {vr(ZU+2*i,2)}")
    for i in range(8):
        A(f"v_cvt_pk_bf16_f32 v{GACC+16+i}, v{GACC+2*i}, v{GACC+2*i+1}")
    A(f"buffer_store_dwordx4 {vr(GACC+16,4)}, v{V_L16}, s[16:19], s5 offen")
    A(f"buffer_store_dwordx4 {vr(GACC+20,4)}, v{V_L16}, s[16:19], s5 offen offset:1024")
    A.label("K2_OFIN")
    A("s_waitcnt lgkmcnt(0)")
    for i in range(7):
        A(f"v_pk_add_f32 {vr(O[0]+2*i,2)}, {vr(O[0]+2*i,2)}, {vr(O[1]+2*i,2)}")
    A(f"v_mov_b32 v{TT}, v{O[0]+12}")
    for i in range(12):
        A(f"v_fma_f32 v{TT}, v{O[0]+i}, 0, v{TT}")
    A(f"s_mov_b32 s5, {f32(2.0**60)}")
    A(f"v_cmp_ngt_f32 vcc, s5, v{TT}")
    A("s_cbranch_vccnz K2_FALLBACK")
    A.label("K2_OSTORE")
    A("s_waitcnt vmcnt(0)")
    A(f"v_rcp_f32 v{TT}, v{O[0]+12}")
    A("s_mul_i32 s5, s50, 94")
    A("s_lshl_b32 s5, s5, 10")
    A(f"s_add_u32 s5, s5, {ACT_OFF}")
    A(f"v_mul_f32 v{TT}, v{TT}, v{VG2}")
    A("s_mul_i32 s6, s51, 5")
    A(f"v_mov_b32 v{TT+1}, v{TT}")
    for i in range(6):
        A(f"v_pk_mul_f32 {vr(O[0]+2*i,2)}, {vr(O[0]+2*i,2)}, {vr(TT,2)}")
    for i in range(6):
        A(f"v_cvt_pk_bf16_f32 v{O[1]+i}, v{O[0]+2*i}, v{O[0]+2*i+1}")
    for j in range(3):
        if j < 2:
            A(f"v_lshl_add_u32 v{TT+2}, v{V_H}, 1, s6")
            if j: A(f"v_add_u32 v{TT+2}, 1, v{TT+2}")
        else:
            A("s_add_u32 s6, s6, 4")
            A(f"v_mov_b32 v{TT+2}, s6")
        A(f"v_lshrrev_b32 v{TT+3}, 1, v{TT+2}")
        A(f"v_lshlrev_b32 v{TT+3}, 9, v{TT+3}")
        A(f"v_and_b32 v{TT+2}, 1, v{TT+2}")
        A(f"v_lshl_add_u32 v{TT+3}, v{TT+2}, 3, v{TT+3}")
        A(f"v_lshl_add_u32 v{TT+4+j}, v{V_LM}, 4, v{TT+3}")
        if j == 2:
            A("s_mov_b64 exec, s[34:35]")
        A(f"buffer_store_dwordx2 {vr(O[1]+2*j,2)}, v{TT+4+j}, s[16:19], s5 offen")
    A.label("K2_END")
    A("s_endpgm")
    A.label("K2_FALLBACK")
    q2 = QF + 4
    A(f"v_mov_b32 v{TT}, 0")
    A(f"v_cndmask_b32 v{q2}, v{q2}, v{TT}, s[44:45]")
    A(f"v_cndmask_b32 v{q2+1}, v{q2+1}, v{TT}, s[44:45]")
    A(f"v_lshlrev_b32 v{V_KA2}, 3, v{V_LM}")
    A(f"v_mul_u32_u24 v{V_VA}, 20, v{V_H}")
    A(f"v_add_u32 v{V_VA}, v{V_VA}, v{V_LM}")
    A(f"v_lshlrev_b32 v{V_VA}, 4, v{V_VA}")
    A(f"v_mov_b32 v{TT}, 0xff800000")
    A(f"s_mov_b32 s54, {KV_OFF}")
    A.label("K2_FB1")
    A(f"buffer_load_dwordx4 {vr(KF,4)}, v{V_L16}, s[16:19], s54 offen")
    A("s_mov_b64 exec, s[34:35]")
    A(f"buffer_load_dwordx2 {vr(KF+4,2)}, v{V_KA2}, s[16:19], s54 offen offset:1024")
    A("s_mov_b64 exec, -1")
    A("s_waitcnt vmcnt(0)")
    A(qk1(S[0], 0)); A(qk2(S[0], 0))
    A("s_nop 15")
    max16(A, TT, S[0], init=True)
    A("s_add_u32 s54, s54, 2560")
    A(f"s_cmp_lt_u32 s54, {KV_OFF + 163840}")
    A("s_cbranch_scc1 K2_FB1")
    set_bias(A, TT, 0, TT + 2)
    for i in range(16):
        A(f"v_mov_b32 v{O[0]+i}, 0")
    A(f"s_mov_b32 s54, {KV_OFF}")
    A.label("K2_FB2")
    A(f"buffer_load_dwordx4 {vr(KF,4)}, v{V_L16}, s[16:19], s54 offen")
    A("s_mov_b64 exec, s[34:35]")
    A(f"buffer_load_dwordx2 {vr(KF+4,2)}, v{V_KA2}, s[16:19], s54 offen offset:1024")
    A("s_mov_b64 exec, s[32:33]")
    A(f"buffer_load_dwordx4 {vr(VF,4)}, v{V_VA}, s[16:19], s54 offen offset:1280")
    A(f"buffer_load_dwordx4 {vr(VF+4,4)}, v{V_VA}, s[16:19], s54 offen offset:1920")
    A("s_mov_b64 exec, -1")
    A("s_waitcnt vmcnt(0)")
    A(qk1(S[0], 0)); A(qk2(S[0], 0))
    A("s_nop 15")
    for i in range(16):
        A(f"v_exp_f32 v{S[0]+i}, v{S[0]+i}")
    A("s_nop 0")
    for i in range(8):
        A(f"v_cvt_pk_bf16_f32 v{S[0]+i}, v{S[0]+2*i}, v{S[0]+2*i+1}")
    A("s_nop 1")
    A(mfma32(O[0], VF, S[0], O[0]))
    A(mfma32(O[0], VF + 4, S[0] + 4, O[0]))
    A("s_add_u32 s54, s54, 2560")
    A(f"s_cmp_lt_u32 s54, {KV_OFF + 163840}")
    A("s_cbranch_scc1 K2_FB2")
    A("s_nop 15")
    A("s_branch K2_OSTORE")
```

```python
from asmlib import *

R = 6
NST = 12
SLOT = 20480
RED_LDS = R * SLOT
K3_LDS = RED_LDS + 4 * 5120
V_LANE = 1
ACC = 16
WF = 56
XR = 96
DMA_O = 192
V_TRB = 197
V_AOFF = 199
V_PF = 201
K3_VGPR = 208

def issue_group(st):
    out = []
    slot = st % R
    pre = f"s_mov_b32 s40, {st*8192}\ns_mov_b32 s41, {st*8192+4096}\n"
    for jj in range(2):
        for sl in range(2):
            x = XR + slot * 16 + jj * 8 + sl * 4
            out.append(pre + f"buffer_load_dwordx4 {vr(x,4)}, v{V_AOFF+sl}, s[32:35], s{40+jj} offen")
            pre = ""
    if st == 5:
        pre = "s_mov_b32 s28, s10\ns_mov_b32 s29, s11\n" + f"s_mov_b32 s30, {864*1280}\n"
    elif st > 0:
        pre = f"s_add_u32 s28, s28, {128*1280}\ns_addc_u32 s29, s29, 0\ns_sub_u32 s30, s30, {128*1280}\n"
    else:
        pre = ""
    for i in range(5):
        out.append(pre + f"s_add_u32 m0, s52, {slot*SLOT + i*1024}\ns_nop 0\nbuffer_load_dwordx4 v{DMA_O+i}, s[28:31], 0 offen lds")
        pre = ""
    return out

def tr_reads(j, nt):
    st, jj = divmod(j, 2)
    slot = st % R
    base = V_TRB + slot // 3
    d = WF + (j % 2) * 20 + nt * 4
    o = (slot % 3) * SLOT + jj * 2 * 5120 + nt * 32
    return [f"ds_read_b64_tr_b16 {vr(d,2)}, v{base} offset:{o}",
            f"ds_read_b64_tr_b16 {vr(d+2,2)}, v{base} offset:{o + 1280}"]

def gen_k3(A, name, text_end_label):
    kernel_begin(A, name)
    A("s_cmp_ge_u32 s2, 256")
    A("s_cbranch_scc1 K3_END")
    A("s_load_dwordx2 s[8:9], s[0:1], 32")
    A("s_load_dwordx2 s[10:11], s[0:1], 72")
    A("s_load_dwordx2 s[12:13], s[0:1], 88")
    A("s_load_dwordx2 s[14:15], s[0:1], 104")
    A("s_getpc_b64 s[56:57]")
    A.label("K3_PC")
    A(f"s_mov_b32 s58, {text_end_label}-K3_PC")
    A("s_mov_b32 s59, 0x00020000")
    A("v_lshlrev_b32 v4, 6, v0")
    A(f"buffer_load_dword v{V_PF}, v4, s[56:59], 0 offen")
    A("s_and_b32 s3, s2, 7")
    A("s_lshr_b32 s4, s2, 3")
    A("s_lshr_b32 s24, s3, 1")
    A("s_lshl_b32 s24, s24, 3")
    A("s_lshr_b32 s5, s4, 2")
    A("s_add_u32 s24, s24, s5")
    A("s_and_b32 s25, s3, 1")
    A("s_lshl_b32 s25, s25, 2")
    A("s_and_b32 s5, s4, 3")
    A("s_add_u32 s25, s25, s5")
    A("v_lshrrev_b32 v5, 6, v0")
    A(f"v_and_b32 v{V_LANE}, 63, v0")
    A("v_readfirstlane_b32 s26, v5")
    A(f"v_and_b32 v2, 15, v0")
    A(f"v_bfe_u32 v3, v0, 4, 2")
    A("s_and_b32 s27, s26, 1")
    A("s_lshr_b32 s44, s26, 1")
    A("s_lshl_b32 s45, s24, 1")
    A("s_add_u32 s45, s45, s27")
    A(f"s_mul_i32 s5, s45, {94*1024}")
    A("s_lshl_b32 s6, s44, 11")
    A("s_add_u32 s5, s5, s6")
    A(f"s_add_u32 s5, s5, {ACT_OFF}")
    A("v_lshlrev_b32 v4, 9, v3")
    A("v_lshl_add_u32 v4, v2, 4, v4")
    A("s_lshl_b32 s6, s44, 8")
    A("s_add_u32 s7, s5, s6")
    A(f"v_add_u32 v{V_AOFF}, s7, v4")
    A("s_xor_b32 s6, s6, 256")
    A("s_add_u32 s7, s5, s6")
    A(f"v_add_u32 v{V_AOFF+1}, s7, v4")
    A("s_mul_i32 s52, s26, 5120")
    A("s_waitcnt lgkmcnt(0)")
    srd(A, 28, 8, 640 * 1280)
    srd(A, 32, 14, WS_BYTES)
    srd(A, 36, 12, 2048 * 1280)
    g0 = issue_group(0)
    for s in g0[:4]: A(s)
    A("s_mul_i32 s5, s25, 160")
    A(f"s_mul_i32 s6, s26, {32*1280}")
    A("s_add_u32 s5, s5, s6")
    A("s_movk_i32 s6, 6554")
    A("s_movk_i32 s7, 1280")
    for i in range(5):
        A(f"v_add_u32 v4, {i*64}, v{V_LANE}")
        A("v_mul_u32_u24 v6, s6, v4")
        A("v_lshrrev_b32 v6, 16, v6")
        A("v_mul_u32_u24 v7, 10, v6")
        A("v_sub_u32 v4, v4, v7")
        A("v_and_b32 v7, 0x13, v6")
        A("v_and_b32 v8, 4, v6")
        A("v_lshl_or_b32 v7, v8, 1, v7")
        A("v_bfe_u32 v8, v6, 3, 1")
        A("v_lshl_or_b32 v7, v8, 2, v7")
        A("v_mul_u32_u24 v7, s7, v7")
        A("v_lshl_add_u32 v7, v4, 4, v7")
        A(f"v_add_u32 v{DMA_O+i}, s5, v7")
        A(g0[4 + i])
    for st in range(1, R):
        for s in issue_group(st): A(s)
    A(f"v_bfe_u32 v4, v{V_LANE}, 2, 2")
    A(f"v_bfe_u32 v6, v{V_LANE}, 4, 1")
    A("v_lshl_add_u32 v4, v6, 2, v4")
    A(f"v_bfe_u32 v6, v{V_LANE}, 5, 1")
    A("v_lshl_add_u32 v4, v6, 4, v4")
    A(f"v_mul_u32_u24 v{V_TRB}, 160, v4")
    A(f"v_and_b32 v4, 3, v{V_LANE}")
    A(f"v_lshl_add_u32 v{V_TRB}, v4, 3, v{V_TRB}")
    A("s_mul_i32 s5, s44, 5120")
    A(f"v_add_u32 v{V_TRB}, s5, v{V_TRB}")
    A(f"v_add_u32 v{V_TRB+1}, {3*SLOT}, v{V_TRB}")
    A(f"s_waitcnt vmcnt({(R-1)*9})")
    A("s_barrier")
    for nt in range(5):
        for r in tr_reads(0, nt): A(r)
    NJ = 2 * NST
    for j in range(NJ):
        st, jj = divmod(j, 2)
        slot = st % R
        pend = []
        if jj == 0 and st >= 1 and st - 1 + R < NST:
            pend = issue_group(st - 1 + R)
        last = (j == NJ - 1)
        boundary = (jj == 1 and not last)
        if last:
            A("s_cmp_eq_u32 s44, 1")
            A("s_cbranch_scc1 K3_LOOPEND")
        for nt in range(5):
            wf = WF + (j % 2) * 20 + nt * 4
            if boundary or last:
                if nt < 2 or last:
                    A(f"s_waitcnt lgkmcnt({(4-nt)*2})")
            else:
                A("s_waitcnt lgkmcnt(8)")
            for sl in range(2):
                acc = ACC + sl * 20 + nt * 4
                xb = XR + slot * 16 + jj * 8 + sl * 4
                c = "0" if j == 0 else vr(acc, 4)
                A(f"v_mfma_f32_16x16x32_bf16 {vr(acc,4)}, {vr(wf,4)}, {vr(xb,4)}, {c}")
            if boundary:
                if nt == 1:
                    hi = min(st - 1 + R, NST - 1)
                    n = max(0, hi - (st + 1)) * 9
                    A(f"s_waitcnt vmcnt({n}) lgkmcnt(0)")
                    A("s_barrier")
                    for m2 in (0, 1):
                        for r in tr_reads(j + 1, m2): A(r)
                elif nt >= 2:
                    for r in tr_reads(j + 1, nt): A(r)
            elif not last:
                for r in tr_reads(j + 1, nt): A(r)
            if pend:
                for _ in range(2):
                    if pend: A(pend.pop(0))
        assert not pend
    A.label("K3_LOOPEND")
    A("s_xor_b32 s5, s26, 2")
    A("s_mul_i32 s5, s5, 5120")
    A(f"s_add_u32 s5, s5, {RED_LDS}")
    A(f"v_lshl_add_u32 v4, v{V_LANE}, 4, s5")
    A(f"s_add_u32 s5, s52, {RED_LDS}")
    A(f"v_lshl_add_u32 v6, v{V_LANE}, 4, s5")
    A("s_lshl_b32 s5, s45, 5")
    A("s_lshl_b32 s6, s44, 4")
    A("s_add_u32 s5, s5, s6")
    A("v_add_u32 v7, s5, v2")
    A("s_movk_i32 s6, 1280")
    A("v_mul_lo_u32 v7, v7, s6")
    A("v_lshl_add_u32 v7, v3, 3, v7")
    A("s_mul_i32 s5, s25, 160")
    for nt in range(5):
        A(f"ds_write_b128 v4, {vr(ACC+20+nt*4,4)} offset:{nt*1024}")
    A("s_waitcnt lgkmcnt(0)")
    A("s_barrier")
    for nt in range(5):
        A(f"ds_read_b128 {vr(XR+nt*4,4)}, v6 offset:{nt*1024}")
    for nt in range(5):
        a = ACC + nt * 4
        A(f"s_waitcnt lgkmcnt({4-nt})")
        A(f"v_pk_add_f32 {vr(a,2)}, {vr(a,2)}, {vr(XR+nt*4,2)}")
        A(f"v_pk_add_f32 {vr(a+2,2)}, {vr(a+2,2)}, {vr(XR+nt*4+2,2)}")
        A(f"v_cvt_pk_bf16_f32 v{a}, v{a}, v{a+1}")
        A(f"v_cvt_pk_bf16_f32 v{a+1}, v{a+2}, v{a+3}")
        A(f"buffer_store_dwordx2 {vr(a,2)}, v7, s[36:39], s5 offen offset:{nt*32}")
    A.label("K3_END")
    A("s_endpgm")
```

```python
import sys
from asmlib import *
import k1
try:
    import k2, k3
except ImportError:
    k2 = k3 = None

NAME = "gated_mix__grouped_kv_mqa__mixer_gmlp__prompt"
HEADER = open("cdna_kernels/" + NAME + ".s.ref").read().split("; Override launch geometry")[0]

def main(out, which=(1, 2, 3)):
    A = Asm()
    launches = []
    descs = []
    A.raw('.amdgcn_target "amdgcn-amd-amdhsa--gfx950"')
    A.raw(".text")
    if 1 in which:
        k1.gen_k1(A, "proj_kernel", "TEXT_END")
        launches.append(f"; @launch kernel=proj_kernel grid=(256,1,1) block=(512,1,1) lds={k1.K1_LDS}")
        descs.append(kernel_desc("proj_kernel", 256))
    if 2 in which:
        k2.gen_k2(A, "attn_kernel", "TEXT_END")
        launches.append(f"; @launch kernel=attn_kernel grid=(256,1,1) block=(512,1,1) lds={k2.K2_LDS}")
        descs.append(kernel_desc("attn_kernel", 256))
    if 3 in which:
        k3.gen_k3(A, "out_kernel", "TEXT_END")
        launches.append(f"; @launch kernel=out_kernel grid=(256,1,1) block=(512,1,1) lds={k3.K3_LDS}")
        descs.append(kernel_desc("out_kernel", k3.K3_VGPR))
    A.label("TEXT_END")
    txt = HEADER + "\n".join(launches) + "\n" + A.text() + '.section .rodata,"a"\n' + "".join(descs)
    open(out, "w").write(txt)

if __name__ == "__main__":
    out = sys.argv[1] if len(sys.argv) > 1 else "cdna_kernels/" + NAME + ".s"
    which = tuple(int(c) for c in sys.argv[2]) if len(sys.argv) > 2 else (1, 2)
    main(out, which)
```

```python
import struct

def f32(x):
    return "0x%08x" % struct.unpack("<I", struct.pack("<f", x))[0]

class Asm:
    def __init__(self):
        self.lines = []
        self.nlabel = 0
    def __call__(self, s):
        for l in s.strip("\n").split("\n"):
            self.lines.append("    " + l.strip())
    def label(self, name):
        self.lines.append(name + ":")
    def raw(self, s):
        self.lines.append(s)
    def comment(self, s):
        self.lines.append("    ; " + s)
    def newlabel(self, p="L"):
        self.nlabel += 1
        return f"{p}_{self.nlabel}"
    def text(self):
        return "\n".join(self.lines) + "\n"

def vr(a, n):
    return f"v[{a}:{a+n-1}]" if n > 1 else f"v{a}"
def sr(a, n):
    return f"s[{a}:{a+n-1}]" if n > 1 else f"s{a}"

def kernel_begin(A, name):
    A.raw(f".globl {name}")
    A.raw(".p2align 8")
    A.raw(f".type {name},@function")
    A.label(name)

def kernel_desc(name, vgpr, sgpr=102, accum=None):
    if accum is None:
        accum = (vgpr + 3) // 4 * 4
    return f""".p2align 6
.amdhsa_kernel {name}
  .amdhsa_next_free_vgpr {vgpr}
  .amdhsa_next_free_sgpr {sgpr}
  .amdhsa_accum_offset {accum}
  .amdhsa_group_segment_fixed_size 0
  .amdhsa_kernarg_size 112
  .amdhsa_user_sgpr_count 2
  .amdhsa_user_sgpr_kernarg_segment_ptr 1
  .amdhsa_system_sgpr_workgroup_id_x 1
.end_amdhsa_kernel
"""

def srd(A, d, base, nbytes):
    A(f"s_mov_b32 s{d}, s{base}")
    A(f"s_mov_b32 s{d+1}, s{base+1}")
    A(f"s_mov_b32 s{d+2}, {nbytes}")
    A(f"s_mov_b32 s{d+3}, 0x00020000")

Q_OFF    = 0x000000
KV_OFF   = 0x280000
GATE_OFF = 0x2C0000
STAT_OFF = 0x2D0000
Z1_OFF   = 0x300000
Z2_OFF   = 0x680000
ACT_OFF  = 0xA00000
WP_OFF   = 0x1000000
WS_BYTES = 0x1200000

import os
PROF = os.environ.get("PROF", "0") == "1"
PROF_OFF = 0x1400000
def stamp_init(A, kidx, wave_sgpr_expr=None):
    if not PROF: return
    A("s_memrealtime s[70:71]")
    A("s_memtime s[72:73]")
    for i in range(1, 8):
        A(f"s_mov_b64 s[{72+2*i}:{73+2*i}], 0")
    A.kidx = kidx
def stamp(A, i):
    if not PROF: return
    A(f"s_memtime s[{72+2*i}:{73+2*i}]")
def endpgm(A):
    if PROF:
        A("s_mov_b64 exec, -1")
        A("s_waitcnt vmcnt(0)")
        A("s_memtime s[86:87]")
        A("s_memrealtime s[88:89]")
        A("s_load_dwordx2 s[92:93], s[0:1], 104")
        A("v_lshrrev_b32 v0, 6, v0")
        A("s_lshl_b32 s90, s2, 3")
        A("v_add_u32 v0, s90, v0")
        A("v_lshlrev_b32 v0, 6, v0")
        A(f"v_add_u32 v0, {PROF_OFF + A.kidx * 0x40000}, v0")
        A("s_waitcnt lgkmcnt(0)")
        A("s_mov_b32 s94, 0x2000000")
        A("s_mov_b32 s95, 0x00020000")
        vals = [70, 88] + [72 + 2 * i for i in range(8)]
        for j, sg in enumerate(vals):
            A(f"v_mov_b32 v1, s{sg}")
            A(f"buffer_store_dword v1, v0, s[92:95], 0 offen offset:{4*j}")
    A("s_endpgm")
```

```python
from asmlib import *
import math, os

R = 4
NST = 10
SLOT = 20480
XB = R * SLOT
GATE_LDS = XB + 4 * R * 4096
TR_STRIDE = 304
K1_LDS = GATE_LDS + 2048
ROT = int(os.environ.get("K1ROT", "1"))
WSP_TOUCH = int(os.environ.get("K1TOUCH", "2"))

V_LANE, V_S, V_H = 1, 2, 3
V_PF = 15
ACC = 16
WF = 96
XF = 136
DMA_A = 144
DMA_LD = 154
V_TRB = 160
V_XRD = 164
V_XD = 168
V_GACC = 170
V_GADDR = 171
V_GBASE = 172
V_L16 = 173
V_GF = 176
T = 180

QSCALE = (20.0 ** -0.5) * math.log2(math.e)
C1 = -2.0 * math.sqrt(2.0 / math.pi) * math.log2(math.e)
C2 = C1 * 0.044715

def issue_group(st, first=False):
    out = []
    slot = st % R
    pre = ""
    if not first:
        pre = "s_add_u32 s62, s62, 128\ns_cmp_eq_u32 s62, 1280\ns_cselect_b32 s62, 0, s62\ns_cselect_b32 s63, s64, 64\n"
    for i in range(4):
        out.append(pre + f"s_add_u32 m0, s53, {slot*4096 + i*1024}\ns_add_u32 s65, s62, {i*10240}\n"
                   f"buffer_load_dwordx4 v{V_XD + i%2}, s[28:31], s65 offen lds")
        pre = ""
    for i in range(5):
        a = DMA_A + 2 * i
        s = ""
        if not first:
            s += f"v_mad_i64_i32 {vr(a,2)}, s[50:51], v{DMA_LD+i}, s63, {vr(a,2)}\n"
        s += f"s_add_u32 m0, s52, {slot*SLOT + i*1024}\n"
        s += "s_nop 0\n"
        s += f"global_load_lds_dwordx4 {vr(a,2)}, off"
        out.append(s)
    return out

def tr_reads(j, mt, qv):
    st, jj = divmod(j, 4)
    slot = st % R
    base = V_TRB + slot // 2
    d = WF + (j % 2) * 20 + mt * 4
    o = (slot % 2) * SLOT + jj * 16 * 320
    if qv:
        if mt == 4: base += 2
        else: o += mt * 80
    else:
        o += mt * 64
    return [f"ds_read_b64_tr_b16 {vr(d,2)}, v{base} offset:{o}",
            f"ds_read_b64_tr_b16 {vr(d+2,2)}, v{base} offset:{o + 4*320}"]

def x_read(j):
    st, jj = divmod(j, 4)
    return f"ds_read_b128 {vr(XF + (j%2)*4, 4)}, v{V_XRD+jj} offset:{(st % R)*4096}"

def gate_adv():
    return f"s_add_u32 s66, s66, 128\ns_cmp_eq_u32 s66, 1280\ns_cselect_b32 s66, 0, s66\nv_add_u32 v{V_GADDR}, s66, v{V_GBASE}"

def mainloop(A, qv):
    gate = qv
    g = 1 if gate else 0
    stamp(A, 1)
    A("s_barrier")
    stamp(A, 2)
    A(x_read(0))
    for mt in range(5):
        for r in tr_reads(0, mt, qv): A(r)
    if gate:
        A(f"ds_read_b128 {vr(V_GF,4)}, v{V_GADDR} offset:0")
    for j in range(40):
        st, jj = divmod(j, 4)
        xb = XF + (j % 2) * 4
        last = (j == 39)
        boundary = (jj == 3 and not last)
        for mt in range(5):
            wf = WF + (j % 2) * 20 + mt * 4
            acc = ACC + mt * 16
            if boundary or last:
                if mt < 2 or last:
                    A(f"s_waitcnt lgkmcnt({(4-mt)*2 + g})")
            elif mt == 0:
                A(f"s_waitcnt lgkmcnt({8 + g})")
            elif mt < 4:
                A(f"s_waitcnt lgkmcnt({9 + g})")
            else:
                A("s_waitcnt lgkmcnt(9)")
            c = "0" if j == 0 else vr(acc, 16)
            A(f"v_mfma_f32_32x32x16_bf16 {vr(acc,16)}, {vr(wf,4)}, {vr(xb,4)}, {c}")
            if boundary:
                if mt == 1:
                    A("s_waitcnt lgkmcnt(0)")
                    A("s_barrier")
                    A(x_read(j + 1))
                    for m2 in (0, 1):
                        for r in tr_reads(j + 1, m2, qv): A(r)
                elif mt >= 2:
                    for r in tr_reads(j + 1, mt, qv): A(r)
            elif not last:
                if mt == 0: A(x_read(j + 1))
                for r in tr_reads(j + 1, mt, qv): A(r)
            if gate and mt == 4:
                if last:
                    A("s_waitcnt lgkmcnt(0)")
                for e in range(4):
                    A(f"v_dot2c_f32_bf16 v{V_GACC}, v{xb+e}, v{V_GF+e}")
                if not last:
                    if boundary: A(gate_adv())
                    A(f"ds_read_b128 {vr(V_GF,4)}, v{V_GADDR} offset:{((j+1)%4)*32}")

def gelu_pairs(A, regs, tmp, vc1, vc2):
    bt = regs
    for i, r in enumerate(bt):
        A(f"v_pk_mul_f32 {vr(tmp+2*i,2)}, {vr(r,2)}, {vr(r,2)}")
    for i, r in enumerate(bt):
        A(f"v_pk_fma_f32 {vr(tmp+2*i,2)}, {vr(tmp+2*i,2)}, {vr(vc2,2)}, {vr(vc1,2)}")
    for i, r in enumerate(bt):
        A(f"v_pk_mul_f32 {vr(tmp+2*i,2)}, {vr(tmp+2*i,2)}, {vr(r,2)}")
    for i, r in enumerate(bt):
        A(f"v_exp_f32 v{tmp+2*i}, v{tmp+2*i}")
        A(f"v_exp_f32 v{tmp+2*i+1}, v{tmp+2*i+1}")
    for i, r in enumerate(bt):
        A(f"v_pk_add_f32 {vr(tmp+2*i,2)}, {vr(tmp+2*i,2)}, 1.0 op_sel_hi:[1,0]")
    for i, r in enumerate(bt):
        A(f"v_rcp_f32 v{tmp+2*i}, v{tmp+2*i}")
        A(f"v_rcp_f32 v{tmp+2*i+1}, v{tmp+2*i+1}")
    for i, r in enumerate(bt):
        A(f"v_pk_mul_f32 {vr(r,2)}, {vr(r,2)}, {vr(tmp+2*i,2)}")

def pack8(A, dst, src):
    for i in range(4):
        A(f"v_cvt_pk_bf16_f32 v{dst+i}, v{src+2*i}, v{src+2*i+1}")

def pi_perm(A, dst, src, t1, keep=0x13):
    A(f"v_and_b32 v{dst}, {keep}, v{src}")
    A(f"v_and_b32 v{t1}, 4, v{src}")
    A(f"v_lshl_or_b32 v{dst}, v{t1}, 1, v{dst}")
    A(f"v_bfe_u32 v{t1}, v{src}, 3, 1")
    A(f"v_lshl_or_b32 v{dst}, v{t1}, 2, v{dst}")

def gen_k1(A, name, text_end_label):
    kernel_begin(A, name)
    A("s_cmp_ge_u32 s2, 256")
    A("s_cbranch_scc1 K1_EXIT")
    stamp_init(A, 0)
    A("s_load_dwordx8 s[8:15], s[0:1], 0")
    A("s_load_dwordx4 s[16:19], s[0:1], 48")
    A("s_load_dwordx4 s[20:23], s[0:1], 96")
    A("s_load_dwordx4 s[44:47], s[0:1], 72")
    A("s_load_dwordx2 s[68:69], s[0:1], 32")
    A("s_getpc_b64 s[56:57]")
    A.label("K1_PC")
    A(f"s_mov_b32 s58, {text_end_label}-K1_PC")
    A("s_mov_b32 s59, 0x00020000")
    A("v_lshlrev_b32 v4, 7, v0")
    A(f"buffer_load_dword v{V_PF}, v4, s[56:59], 0 offen")
    A("s_and_b32 s3, s2, 7")
    A("s_lshr_b32 s4, s2, 3")
    A("s_and_b32 s24, s3, 1")
    A("s_lshl_b32 s24, s24, 3")
    A("s_and_b32 s5, s4, 7")
    A("s_add_u32 s24, s24, s5")
    A("s_lshr_b32 s25, s3, 1")
    A("s_lshl_b32 s25, s25, 2")
    A("s_lshr_b32 s6, s4, 3")
    A("s_add_u32 s25, s25, s6")
    if ROT:
        A("s_mul_i32 s5, s5, 5")
        A("s_mul_i32 s6, s6, 10")
        A("s_add_u32 s5, s5, s6")
        A("s_lshr_b32 s67, s5, 2")
        A("s_cmp_ge_u32 s67, 10")
        A("s_cselect_b32 s5, 10, 0")
        A("s_sub_u32 s67, s67, s5")
    else:
        A("s_mov_b32 s67, 0")
    A("v_lshrrev_b32 v5, 6, v0")
    A(f"v_and_b32 v{V_LANE}, 63, v0")
    A("v_readfirstlane_b32 s49, v5")
    A(f"v_and_b32 v{V_S}, 31, v0")
    A(f"v_bfe_u32 v{V_H}, v0, 5, 1")
    A(f"v_lshlrev_b32 v{V_L16}, 4, v{V_LANE}")
    A("s_and_b32 s26, s49, 3")
    A("s_lshl_b32 s27, s24, 2")
    A("s_add_u32 s27, s27, s26")
    A(f"s_mul_i32 s53, s26, {R*4096}")
    A(f"s_add_u32 s53, s53, {XB}")
    A("s_lshl_b32 s62, s67, 7")
    A("s_mov_b32 s66, s62")
    A("s_mul_i32 s5, s24, 6")
    A("s_add_u32 s5, s5, s25")
    A("s_lshl_b32 s5, s5, 2")
    A("s_add_u32 s5, s5, s26")
    A("s_lshl_b32 s5, s5, 8")
    A(f"s_add_u32 s5, s5, {STAT_OFF - 10*1024}")
    A(f"v_lshl_add_u32 v7, v{V_S}, 3, s5")
    A("s_cmp_lt_u32 s49, 4")
    A("s_cbranch_scc1 K1_COMPUTE")
    A("s_lshl_b32 s5, s27, 5")
    A(f"v_lshrrev_b32 v4, 3, v{V_LANE}")
    A("v_add_u32 v4, s5, v4")
    A("s_movk_i32 s5, 1280")
    A("v_mul_lo_u32 v4, v4, s5")
    A(f"v_lshrrev_b32 v6, 4, v{V_LANE}")
    A(f"v_and_b32 v8, 7, v{V_LANE}")
    A("v_xor_b32 v6, v6, v8")
    A(f"v_lshl_add_u32 v{V_XD}, v6, 4, v4")
    A(f"v_xor_b32 v{V_XD+1}, 64, v{V_XD}")
    A("s_mul_i32 s52, s26, 5120")
    A("s_mov_b32 s64, -576")
    A("v_mov_b32 v8, 0")
    A("v_mov_b32 v9, -1")
    A("s_waitcnt lgkmcnt(0)")
    srd(A, 28, 8, 2048 * 1280)
    srd(A, 32, 22, WS_BYTES)
    srd(A, 36, 46, 1280)
    A("s_mov_b32 s60, s44")
    A("s_mov_b32 s61, s45")
    A("s_cmp_lt_u32 s25, 10")
    A("s_cbranch_scc1 K1_NOCLR")
    A("buffer_store_dwordx2 v[8:9], v7, s[32:35], 0 offen sc1")
    A.label("K1_NOCLR")
    A("s_cmp_gt_u32 s26, 1")
    A("s_cbranch_scc1 K1_NOGATE")
    A("s_lshl_b32 s5, s26, 10")
    A(f"s_add_u32 m0, s5, {GATE_LDS}")
    A(f"v_add_u32 v4, s5, v{V_L16}")
    A("buffer_load_dwordx4 v4, s[36:39], 0 offen lds")
    A.label("K1_NOGATE")
    g0 = issue_group(0, first=True)
    for s in g0[:4]: A(s)
    A("s_cmp_ge_u32 s25, 4")
    A("s_cbranch_scc1 K1_ZBLK")
    A("s_mul_i32 s5, s25, 320")
    A("s_add_u32 s40, s10, s5")
    A("s_addc_u32 s41, s11, 0")
    A("s_movk_i32 s42, 1280")
    A("s_add_u32 s44, s40, 288")
    A("s_addc_u32 s45, s41, 0")
    A("s_add_u32 s46, s40, 304")
    A("s_addc_u32 s47, s41, 0")
    A("s_mov_b32 s48, s42")
    A("s_branch K1_PARAMS_DONE")
    A.label("K1_ZBLK")
    A("s_sub_u32 s5, s25, 4")
    A("s_mul_i32 s5, s5, 288")
    A("s_add_u32 s40, s16, s5")
    A("s_addc_u32 s41, s17, 0")
    A("s_movk_i32 s42, 3456")
    A("s_add_u32 s44, s40, 256")
    A("s_addc_u32 s45, s41, 0")
    A("s_add_u32 s46, s40, 272")
    A("s_addc_u32 s47, s41, 0")
    A("s_mov_b32 s48, s42")
    A("s_cmp_gt_u32 s25, 6")
    A("s_cbranch_scc1 K1_PARAMS_DONE")
    A("s_mov_b32 s48, 40")
    A("s_cmp_eq_u32 s25, 5")
    A("s_cbranch_scc1 K1_CB5")
    A("s_cmp_eq_u32 s25, 4")
    A("s_cselect_b32 s44, s12, s14")
    A("s_cselect_b32 s45, s13, s15")
    A("s_add_u32 s46, s44, 16")
    A("s_addc_u32 s47, s45, 0")
    A("s_branch K1_PARAMS_DONE")
    A.label("K1_CB5")
    A("s_add_u32 s44, s12, 24")
    A("s_addc_u32 s45, s13, 0")
    A("s_add_u32 s46, s14, 24")
    A("s_addc_u32 s47, s15, 0")
    A.label("K1_PARAMS_DONE")
    A("v_mov_b32 v8, s44")
    A("v_mov_b32 v9, s45")
    A("v_mov_b32 v10, s46")
    A("v_mov_b32 v11, s47")
    A("v_mov_b32 v12, s48")
    A("s_lshl_b32 s5, s26, 4")
    A("s_lshl_b32 s6, s67, 6")
    A("s_add_u32 s5, s5, s6")
    A("s_movk_i32 s6, 3277")
    for i in range(5):
        a = DMA_A + 2 * i
        A(f"v_add_u32 v4, {i*64}, v{V_LANE}")
        A("v_mul_u32_u24 v13, s6, v4")
        A("v_lshrrev_b32 v13, 16, v13")
        A("v_mul_u32_u24 v14, 20, v13")
        A("v_sub_u32 v4, v4, v14")
        A("v_add_u32 v13, s5, v13")
        A(f"v_mad_u64_u32 {vr(a,2)}, s[50:51], v4, 16, s[40:41]")
        A(f"v_mov_b32 v{DMA_LD+i}, s42")
        A("v_cmp_eq_u32 vcc, 18, v4")
        A("v_cmp_eq_u32 s[54:55], 19, v4")
        A("s_nop 0")
        A(f"v_cndmask_b32 v{a}, v{a}, v8, vcc")
        A(f"v_cndmask_b32 v{a+1}, v{a+1}, v9, vcc")
        A(f"v_cndmask_b32 v{DMA_LD+i}, v{DMA_LD+i}, v12, vcc")
        A(f"v_cndmask_b32 v{a}, v{a}, v10, s[54:55]")
        A(f"v_cndmask_b32 v{a+1}, v{a+1}, v11, s[54:55]")
        A(f"v_cndmask_b32 v{DMA_LD+i}, v{DMA_LD+i}, v12, s[54:55]")
        A(f"v_mad_u64_u32 {vr(a,2)}, s[50:51], v13, v{DMA_LD+i}, {vr(a,2)}")
        A(g0[4 + i])
    LA = R - 1
    for st in range(1, LA):
        for s in issue_group(st): A(s)
    stamp(A, 1)
    for st in range(NST):
        hi = min(st - 1 + LA, NST - 1)
        A(f"s_waitcnt vmcnt({(hi - st) * 9})")
        A("s_barrier")
        if st == 0: stamp(A, 2)
        if st + LA < NST:
            for s in issue_group(st + LA): A(s)
    stamp(A, 3)
    A("s_cmp_lt_u32 s25, 10")
    A("s_cbranch_scc1 K1_NOSIG")
    A("s_mov_b64 exec, 1")
    A("s_lshl_b32 s5, s27, 2")
    A("v_mov_b32 v4, s5")
    A("v_mov_b32 v5, 1")
    A("global_atomic_add v4, v5, s[20:21] sc1")
    A("s_mov_b64 exec, -1")
    A.label("K1_NOSIG")
    A("s_lshl_b32 s7, s2, 2")
    A("s_add_u32 s7, s7, s26")
    A("s_cmp_ge_u32 s7, 940")
    A("s_cbranch_scc1 K1_NOREP")
    A("s_cmp_lt_u32 s7, 400")
    A("s_cselect_b32 s36, s68, s60")
    A("s_cselect_b32 s37, s69, s61")
    A(f"s_mov_b32 s38, {864*1280}")
    A(f"s_cselect_b32 s38, {640*1280}, s38")
    A("s_cselect_b32 s5, 0, 400")
    A("s_sub_u32 s5, s7, s5")
    A("s_lshl_b32 s5, s5, 11")
    A(f"v_add_u32 v8, s5, v{V_L16}")
    RP = ACC
    for i in range(2):
        A(f"buffer_load_dwordx4 {vr(RP+4*i,4)}, v8, s[36:39], 0 offen offset:{i*1024}")
    A("s_lshl_b32 s5, s7, 7")
    A(f"v_add_u32 v8, s5, v{V_LANE}")
    A("s_mov_b32 s40, 53687092")
    A("s_movk_i32 s41, 6554")
    A("s_mov_b32 s42, 245760")
    for i in range(2):
        A("v_mul_hi_u32 v9, v8, s40")
        A("v_mul_u32_u24 v10, 80, v9")
        A("v_sub_u32 v10, v8, v10")
        A("v_mul_u32_u24 v11, s41, v10")
        A("v_lshrrev_b32 v11, 16, v11")
        A("v_mul_u32_u24 v12, 10, v11")
        A("v_sub_u32 v10, v10, v12")
        pi_perm(A, 12, 9, 13, keep="0xfffffff3")
        A("v_mul_u32_u24 v12, 160, v12")
        A("v_lshl_add_u32 v12, v10, 4, v12")
        A("v_mad_u32_u24 v12, v11, s42, v12")
        A(f"v_add_u32 v{RP+8+i}, {WP_OFF}, v12")
        A("v_add_u32 v8, 64, v8")
    A("s_waitcnt vmcnt(0)")
    for i in range(2):
        A(f"buffer_store_dwordx4 {vr(RP+4*i,4)}, v{RP+8+i}, s[32:35], 0 offen")
    A.label("K1_NOREP")
    if WSP_TOUCH:
        srd(A, 96, 18, 2048 * 4096)
        n = 8 * WSP_TOUCH
        A("s_lshl_b32 s5, s4, 2")
        A("s_add_u32 s5, s5, s26")
        A("s_lshl_b32 s5, s5, 13")
        A("s_lshl_b32 s6, s3, 20")
        A("s_add_u32 s5, s5, s6")
        A(f"v_and_b32 v8, 7, v{V_LANE}")
        A(f"v_lshrrev_b32 v9, 3, v{V_LANE}")
        A("v_lshlrev_b32 v8, 10, v8")
        A("v_lshl_add_u32 v8, v9, 7, v8")
        A("v_add_u32 v8, s5, v8")
        A(f"s_mov_b32 exec_lo, {hex((1 << min(n, 32)) - 1)}")
        A(f"s_mov_b32 exec_hi, {hex((1 << max(n - 32, 0)) - 1)}")
        A(f"buffer_load_dword v{V_PF}, v8, s[96:99], 0 offen")
    A("s_branch K1_END")
    A.label("K1_COMPUTE")
    A("s_lshl_b32 s5, s27, 5")
    A(f"v_add_u32 v6, s5, v{V_S}")
    A(f"v_bfe_u32 v4, v{V_LANE}, 2, 2")
    A(f"v_lshl_add_u32 v4, v{V_H}, 3, v4")
    A("v_mul_u32_u24 v4, 320, v4")
    A(f"v_bfe_u32 v8, v{V_LANE}, 4, 1")
    A(f"v_and_b32 v9, 1, v{V_LANE}")
    A(f"v_bfe_u32 v10, v{V_LANE}, 1, 1")
    A("v_lshl_add_u32 v9, v9, 1, v10")
    A("s_cmp_lt_u32 s25, 4")
    A("s_cselect_b32 s5, 40, 32")
    A("v_mul_u32_u24 v10, s5, v8")
    A("v_add_u32 v10, v10, v4")
    A(f"v_lshl_add_u32 v{V_TRB}, v9, 3, v10")
    A(f"v_add_u32 v{V_TRB+1}, {2*SLOT}, v{V_TRB}")
    A("v_lshl_add_u32 v10, v8, 2, v9")
    A("v_mul_u32_u24 v10, 40, v10")
    A(f"v_add3_u32 v{V_TRB+2}, v10, v4, 32")
    A(f"v_add_u32 v{V_TRB+3}, {2*SLOT}, v{V_TRB+2}")
    A(f"v_bfe_u32 v4, v{V_S}, 1, 3")
    A(f"v_xor_b32 v4, v4, v{V_H}")
    A("v_lshlrev_b32 v4, 4, v4")
    A(f"v_lshl_add_u32 v4, v{V_S}, 7, v4")
    for jj in range(4):
        A(f"v_xor_b32 v{V_XRD+jj}, {jj*32}, v4")
        A(f"v_add_u32 v{V_XRD+jj}, s53, v{V_XRD+jj}")
    A(f"v_lshlrev_b32 v{V_GBASE}, 4, v{V_H}")
    A(f"v_add_u32 v{V_GBASE}, {GATE_LDS}, v{V_GBASE}")
    A(f"v_add_u32 v{V_GADDR}, s66, v{V_GBASE}")
    A(f"v_mov_b32 v{V_GACC}, 0")
    vc1, vc2 = T, T + 2
    A(f"v_mov_b32 v{vc1}, {f32(C1)}")
    A(f"v_mov_b32 v{vc1+1}, {f32(C1)}")
    A(f"v_mov_b32 v{vc2}, {f32(C2)}")
    A(f"v_mov_b32 v{vc2+1}, {f32(C2)}")
    A("s_waitcnt lgkmcnt(0)")
    srd(A, 32, 22, WS_BYTES)
    A("s_cmp_lt_u32 s25, 4")
    A("s_cbranch_scc1 K1_LOOP_Q")
    mainloop(A, qv=False)
    stamp(A, 3)
    A("s_nop 3")
    regs = [ACC + 2 * i for i in range(36)]
    A("s_cmp_ge_u32 s25, 10")
    A("s_cbranch_scc1 K1_EPI_Z2")
    A("s_mul_i32 s5, s27, 54")
    A("s_sub_u32 s6, s25, 4")
    A("s_mul_i32 s6, s6, 9")
    A("s_add_u32 s5, s5, s6")
    A("s_lshl_b32 s5, s5, 10")
    A(f"s_add_u32 s5, s5, {Z1_OFF}")
    A(f"v_add_u32 v4, s5, v{V_L16}")
    for G in range(9):
        gelu_pairs(A, regs[4 * G:4 * G + 4], T + 8, vc1, vc2)
        d = T + 16 + (G % 8) * 4
        pack8(A, d, ACC + 8 * G)
        if G % 4 == 0 and G > 0:
            A(f"v_add_u32 v4, 4096, v4")
        A(f"buffer_store_dwordx4 {vr(d,4)}, v4, s[32:35], 0 offen offset:{(G%4)*1024}")
    A("s_cmp_gt_u32 s25, 6")
    A("s_cbranch_scc1 K1_END")
    SP = ACC + 72
    d = T + 64
    pack8(A, d, SP)
    A("s_mul_i32 s5, s27, 2560")
    A(f"s_add_u32 s5, s5, {KV_OFF}")
    pi_perm(A, 8, V_S, 9)
    A(f"v_bfe_u32 v9, v{V_S}, 4, 1")
    A("v_mul_u32_u24 v10, 640, v9")
    A(f"v_bfe_u32 v9, v{V_S}, 3, 1")
    A("v_mul_u32_u24 v9, 320, v9")
    A("v_add_u32 v10, v10, v9")
    A(f"v_and_b32 v9, 7, v{V_S}")
    A("v_lshl_add_u32 v10, v9, 1, v10")
    A("v_add_u32 v10, s5, v10")
    A("s_cmp_eq_u32 s25, 5")
    A("s_cbranch_scc1 K1_SP5")
    A("s_cmp_eq_u32 s25, 6")
    A("s_cbranch_scc1 K1_SP6")
    A(f"v_lshl_add_u32 v9, v{V_H}, 5, v8")
    A("v_lshl_add_u32 v9, v9, 4, s5")
    A(f"buffer_store_dwordx4 {vr(d,4)}, v9, s[32:35], 0 offen")
    A("s_branch K1_END")
    A.label("K1_SP5")
    A("v_lshl_add_u32 v9, v8, 3, s5")
    A("s_mov_b32 exec_hi, 0")
    A(f"buffer_store_dwordx2 {vr(d+2,2)}, v9, s[32:35], 0 offen offset:1024")
    A("s_mov_b32 exec_hi, -1")
    A("s_mov_b32 exec_lo, 0")
    for e in range(4):
        op = "buffer_store_short_d16_hi" if e % 2 else "buffer_store_short"
        A(f"{op} v{d+2+e//2}, v10, s[32:35], 0 offen offset:{1280 + (16+e)*16}")
    A("s_branch K1_END")
    A.label("K1_SP6")
    A(f"v_lshl_add_u32 v10, v{V_H}, 6, v10")
    for e in range(8):
        op = "buffer_store_short_d16_hi" if e % 2 else "buffer_store_short"
        m = (e & 3) | ((e >> 2) << 3)
        A(f"{op} v{d+e//2}, v10, s[32:35], 0 offen offset:{1280 + m*16}")
    A("s_branch K1_END")
    A.label("K1_EPI_Z2")
    SUM, SQ = T + 4, T + 6
    for G in range(9):
        gelu_pairs(A, regs[4 * G:4 * G + 4], T + 8, vc1, vc2)
        if G == 6:
            A("s_lshl_b32 s5, s27, 2")
            A("v_mov_b32 v4, s5")
            A("global_load_dword v5, v4, s[20:21] sc1")
        for i, r in enumerate(regs[4 * G:4 * G + 4]):
            if G == 0 and i == 0:
                A(f"v_pk_mul_f32 {vr(SQ,2)}, {vr(r,2)}, {vr(r,2)}")
                A(f"v_mov_b32 v{SUM}, v{r}")
                A(f"v_mov_b32 v{SUM+1}, v{r+1}")
            else:
                A(f"v_pk_add_f32 {vr(SUM,2)}, {vr(SUM,2)}, {vr(r,2)}")
                A(f"v_pk_fma_f32 {vr(SQ,2)}, {vr(r,2)}, {vr(r,2)}, {vr(SQ,2)}")
    stamp(A, 4)
    A(f"v_add_f32 v8, v{SUM}, v{SUM+1}")
    A(f"v_add_f32 v9, v{SQ}, v{SQ+1}")
    A("v_mov_b32 v10, v8")
    A("v_mov_b32 v11, v9")
    A("s_nop 1")
    A("v_permlane32_swap_b32 v8, v10")
    A("v_permlane32_swap_b32 v9, v11")
    A("s_nop 1")
    A("v_add_f32 v8, v8, v10")
    A("v_add_f32 v9, v9, v11")
    A("v_and_b32 v9, 0x7fffffff, v9")
    A("buffer_store_dwordx2 v[8:9], v7, s[32:35], 0 offen sc1")
    A("s_mul_i32 s5, s24, 24")
    A("s_add_u32 s5, s5, s26")
    A("s_lshl_b32 s5, s5, 8")
    A(f"s_add_u32 s5, s5, {STAT_OFF}")
    A(f"v_lshl_add_u32 v12, v{V_S}, 3, s5")
    A(f"v_mul_u32_u24 v13, 3072, v{V_H}")
    A("v_add_u32 v12, v12, v13")
    A(f"v_mul_u32_u24 v14, {TR_STRIDE}, v{V_S}")
    A(f"v_lshl_add_u32 v14, v{V_H}, 4, v14")
    A("v_add_u32 v14, s53, v14")
    TA, TB = T + 60, T + 61
    A(f"v_lshrrev_b32 v13, 4, v{V_LANE}")
    A(f"v_bfe_u32 v{TA}, v{V_LANE}, 2, 2")
    A(f"v_lshl_add_u32 v{TA}, v13, 3, v{TA}")
    A(f"v_mul_u32_u24 v{TA}, {TR_STRIDE}, v{TA}")
    A(f"v_and_b32 v10, 1, v{V_LANE}")
    A(f"v_lshl_add_u32 v{TA}, v10, 4, v{TA}")
    A(f"v_bfe_u32 v10, v{V_LANE}, 1, 1")
    A(f"v_lshl_add_u32 v{TA}, v10, 3, v{TA}")
    A(f"v_add_u32 v{TA}, s53, v{TA}")
    A(f"v_lshlrev_b32 v{TB}, 9, v13")
    A(f"v_and_b32 v10, 15, v{V_LANE}")
    A(f"v_lshl_add_u32 v{TB}, v10, 4, v{TB}")
    A("s_lshl_b32 s6, s27, 11")
    A(f"s_add_u32 s6, s6, {Z2_OFF}")
    A(f"v_add_u32 v{TB}, s6, v{TB}")
    A("s_sub_u32 s7, s25, 10")
    A("s_mul_i32 s7, s7, 9")
    A("s_waitcnt vmcnt(1)")
    A.label("K1_POLL1")
    A("v_cmp_gt_u32 vcc, 6, v5")
    A("s_cbranch_vccz K1_POLL2")
    A("s_sleep 1")
    A("global_load_dword v5, v4, s[20:21] sc1")
    A("s_waitcnt vmcnt(0)")
    A("s_branch K1_POLL1")
    A.label("K1_POLL2")
    P = T + 8
    for i in range(3):
        A(f"buffer_load_dwordx2 {vr(P+2*i,2)}, v12, s[32:35], 0 offen offset:{i*1024} sc1")
    A("s_waitcnt vmcnt(0)")
    A(f"v_or3_b32 v13, v{P+1}, v{P+3}, v{P+5}")
    A("v_cmp_gt_i32 vcc, 0, v13")
    A("s_cbranch_vccnz K1_POLL2")
    stamp(A, 5)
    A(f"v_add_f32 v8, v{P}, v{P+2}")
    A(f"v_add_f32 v9, v{P+1}, v{P+3}")
    A(f"v_add_f32 v8, v8, v{P+4}")
    A(f"v_add_f32 v9, v9, v{P+5}")
    A("v_mov_b32 v10, v8")
    A("v_mov_b32 v11, v9")
    A("s_nop 1")
    A("v_permlane32_swap_b32 v8, v10")
    A("v_permlane32_swap_b32 v9, v11")
    A("s_nop 1")
    A("v_add_f32 v8, v8, v10")
    A("v_add_f32 v9, v9, v11")
    A(f"v_mul_f32 v8, {f32(1.0/864)}, v8")
    A(f"v_mul_f32 v9, {f32(1.0/864)}, v9")
    A("v_fma_f32 v9, -v8, v8, v9")
    A("v_max_f32 v9, 0, v9")
    A(f"v_add_f32 v9, {f32(1e-5)}, v9")
    A("v_rsq_f32 v10, v9")
    A("s_nop 0")
    A("v_mul_f32 v12, v8, v10")
    A("v_sub_f32 v12, 0, v12")
    A("v_mov_b32 v11, v10")
    A("v_mov_b32 v13, v12")
    D = T + 16
    def trd(G):
        a = ACC + 4 * G
        A(f"ds_read_b64_tr_b16 {vr(a,2)}, v{TA} offset:{G*32}")
        A(f"ds_read_b64_tr_b16 {vr(a+2,2)}, v{TA} offset:{G*32 + 4*TR_STRIDE}")
    def st(G):
        a = ACC + 4 * G
        A(f"s_add_u32 s5, s7, {G}")
        A("s_lshr_b32 s6, s5, 1")
        A("s_lshl_b32 s6, s6, 17")
        A("s_and_b32 s5, s5, 1")
        A("s_lshl_b32 s5, s5, 8")
        A("s_add_u32 s5, s5, s6")
        A(f"buffer_store_dwordx4 {vr(a,4)}, v{TB}, s[32:35], s5 offen")
    for G in range(9):
        a = ACC + 8 * G
        for i in range(4):
            A(f"v_pk_fma_f32 {vr(a+2*i,2)}, {vr(a+2*i,2)}, v[10:11], v[12:13]")
        pack8(A, D + 4 * G, a)
        A(f"ds_write_b128 v14, {vr(D+4*G,4)} offset:{G*32}")
        trd(G)
        if G >= 2:
            A("s_waitcnt lgkmcnt(6)")
            st(G - 2)
    A("s_waitcnt lgkmcnt(3)")
    st(7)
    A("s_waitcnt lgkmcnt(0)")
    st(8)
    A.label("K1_END")
    endpgm(A)
    A.label("K1_EXIT")
    A("s_endpgm")
    A.label("K1_LOOP_Q")
    mainloop(A, qv=True)
    stamp(A, 3)
    A("s_nop 3")
    A(f"v_mov_b32 v4, v{V_GACC}")
    A("s_nop 1")
    A(f"v_permlane32_swap_b32 v4, v{V_GACC}")
    A("s_nop 1")
    A(f"v_add_f32 v4, v4, v{V_GACC}")
    A(f"v_mul_f32 v4, {f32(-math.log2(math.e))}, v4")
    A("v_exp_f32 v4, v4")
    A("s_nop 0")
    A("v_add_f32 v4, 1.0, v4")
    A("v_rcp_f32 v4, v4")
    A("v_lshlrev_b32 v5, 2, v6")
    A(f"v_add_u32 v5, {GATE_OFF}, v5")
    A("s_cmp_lg_u32 s25, 0")
    A("s_cbranch_scc1 K1_NOGST")
    A("buffer_store_dword v4, v5, s[32:35], 0 offen")
    A.label("K1_NOGST")
    A(f"s_mov_b32 s40, {f32(QSCALE)}")
    A(f"s_mov_b32 s41, {f32(QSCALE)}")
    A("s_lshl_b32 s5, s27, 5")
    A("s_lshl_b32 s6, s25, 3")
    A("s_add_u32 s5, s5, s6")
    A("s_mul_i32 s5, s5, 1280")
    A(f"v_mul_u32_u24 v10, 2560, v{V_H}")
    A(f"v_lshl_add_u32 v10, v{V_S}, 3, v10")
    for mt in range(5):
        for g in range(2):
            a = ACC + mt * 16 + g * 8
            d = T + ((mt * 2 + g) % 8) * 4
            for i in range(4):
                A(f"v_pk_mul_f32 {vr(a+2*i,2)}, {vr(a+2*i,2)}, s[40:41]")
            pack8(A, d, a)
            if mt < 4:
                A(f"s_add_u32 s6, s5, {Q_OFF + (2*mt+g)*1280}")
                A(f"buffer_store_dwordx4 {vr(d,4)}, v{V_L16}, s[32:35], s6 offen")
            else:
                A(f"s_add_u32 s6, s5, {Q_OFF + 4*g*1280}")
                A(f"buffer_store_dwordx2 {vr(d,2)}, v10, s[32:35], s6 offen offset:1024")
                A(f"buffer_store_dwordx2 {vr(d+2,2)}, v10, s[32:35], s6 offen offset:{1024+1280}")
    A("s_branch K1_END")
```

```python
from asmlib import *
import math, os
EXP = os.environ.get('K2EXP', '')

K2_LDS = 163840
KVS = 20480
WSS = 32768
SLOT = KVS + WSS
V_LANE, V_LM, V_H = 1, 2, 3
V_KA1, V_KA2, V_VA = 4, 5, 6
V_GA = 7
V_WD = 9
V_L16 = 11
V_T0 = 12
S = [16, 32]
O = [48, 64]
GACC = 80
GA = 144
GB = 176
V_BAK = 184
V_G0 = 192
KF = 208
VF = 216
QF = 232
TT = 244
V_PF = 214

SEQ_G  = "eeeBceec1eece2eceeGceecHeeceAc"
SEQ_N  = "eeeBceece1eceec2eeceeceeceAc"

def mfma32(d, a, b, c):
    return f"v_mfma_f32_32x32x16_bf16 {vr(d,16)}, {vr(a,4)}, {vr(b,4)}, {c if c == '0' else vr(c,16)}"

def qk1(sb, slot, kf=KF): return mfma32(sb, kf, QF + slot * 6, "0")
def qk2(sb, slot, kf=KF): return f"v_mfma_f32_32x32x8_bf16 {vr(sb,16)}, {vr(kf+4,2)}, {vr(QF+slot*6+4,2)}, {vr(sb,16)}"

def kv_reads_k1(blk):
    return f"ds_read_b128 {vr(KF,4)}, v{V_KA1} offset:{blk*2560}"
def kv_reads_rest(blk, vbuf):
    return "\n".join([
        "s_mov_b64 exec, s[34:35]",
        f"ds_read_b64 {vr(KF+4,2)}, v{V_KA2} offset:{blk*2560+1024}",
        "s_mov_b64 exec, s[32:33]",
        f"ds_read_b128 {vr(VF+vbuf*8,4)}, v{V_VA} offset:{blk*2560+1280}",
        f"ds_read_b128 {vr(VF+vbuf*8+4,4)}, v{V_VA} offset:{blk*2560+1920}",
        "s_mov_b64 exec, -1"])

def g_loadA(ks):
    return [f"buffer_load_dwordx4 {vr(GA+ks*8+a*4,4)}, v{V_GA+a}, s[40:43], s37 offen offset:{ks*1024}" for a in range(2)]
def dma_kv(i):
    if i < 2:
        return f"s_mov_b32 m0, s64\ns_nop 0\nbuffer_load_dwordx4 v{V_L16}, s[96:99], s66 offen offset:{i*1024} lds"
    return f"s_mov_b32 m0, s64\ns_mov_b64 exec, s[34:35]\nbuffer_load_dwordx4 v{V_L16}, s[96:99], s66 offen offset:2048 lds\ns_mov_b64 exec, -1"
def dma_w(i):
    return f"s_add_u32 m0, s65, {i*1024}\ns_add_u32 s39, s38, {i*32768}\nbuffer_load_dwordx4 v{V_WD + i%2}, s[20:23], s39 offen lds"

def vmem_plan(G):
    plan = {}
    if G:
        plan[(0, 'G')] = [("dma", dma_w(0))]
        plan[(0, 'H')] = [("dma", dma_w(1))]
        plan[(1, 'G')] = [("dma", dma_w(2))]
        plan[(2, 'G')] = [("dma", dma_w(3))]
        plan[(2, 'H')] = [("dma", dma_kv(0))]
        plan[(4, 'H')] = [("dma", dma_kv(1))]
        plan[(6, 'H')] = [("dma", dma_kv(2))]
        for ks in range(4):
            l = g_loadA(ks)
            plan.setdefault((2 * ks + 1, 'H'), []).append((f"A{ks}", l[0]))
            plan.setdefault((2 * ks + 1, 'A'), []).append((f"A{ks}", l[1]))
    else:
        plan[(1, 'A')] = [("dma", dma_kv(0))]
        plan[(3, 'A')] = [("dma", dma_kv(1))]
        plan[(5, 'A')] = [("dma", dma_kv(2))]
    return plan

def plan_order(G):
    plan = vmem_plan(G)
    out = []
    for p in range(8):
        for ch in (SEQ_G if G else SEQ_N):
            for tag, txt in plan.get((p, ch), []):
                out.append((p, ch, tag, txt))
    return out

def a_wait(ks):
    order = plan_order(True)
    last = max(i for i, o in enumerate(order) if o[2] == f"A{ks}")
    n = len(order) - 1 - last
    pos2 = SEQ_G.index('2')
    n += sum(1 for o in order if o[0] < 2 * ks or (o[0] == 2 * ks and SEQ_G.index(o[1]) < pos2))
    return n

def phase(A, p, G):
    it = p // 2
    sc, so = S[p % 2], S[(p + 1) % 2]
    e = c = 0
    vb_prev = ((p - 1) // 2) % 2
    vb_cur = it % 2
    ks, b = p // 2, p % 2
    plan = vmem_plan(G)
    gb = GB + (p % 2) * 4
    for ch in (SEQ_G if G else SEQ_N):
        if ch == 'e':
            A(f"v_exp_f32 v{sc+e}, v{sc+e}"); e += 1
        elif ch == 'c':
            A(f"v_cvt_pk_bf16_f32 v{sc+c}, v{sc+2*c}, v{sc+2*c+1}"); c += 1
        elif ch == 'B':
            oo = O[(p + 1) % 2]
            A(mfma32(oo, VF + vb_prev * 8 + 4, so + 4, oo))
            if p % 2 == 1:
                A("s_waitcnt lgkmcnt(0)")
            if G and 'l' not in EXP:
                A(f"ds_read_b128 {vr(gb,4)}, v{V_BAK+ks} offset:{b*4096}")
        elif ch == '1':
            A(qk1(so, (p + 1) % 2))
            if p % 2 == 0 and 'k' not in EXP:
                A(kv_reads_k1(it))
        elif ch == '2':
            A(qk2(so, (p + 1) % 2))
            if p % 2 == 0:
                if 'k' not in EXP: A(kv_reads_rest(it, (it + 1) % 2))
                if G:
                    A(f"s_waitcnt vmcnt({a_wait(ks)}) lgkmcnt(4)")
            elif G:
                A("s_waitcnt lgkmcnt(0)")
        elif ch == 'G':
            A(mfma32(GACC + (0 * 2 + b) * 16, GA + ks * 8, gb, GACC + (0 * 2 + b) * 16))
        elif ch == 'H':
            A(mfma32(GACC + (1 * 2 + b) * 16, GA + ks * 8 + 4, gb, GACC + (1 * 2 + b) * 16))
        elif ch == 'A':
            oo = O[p % 2]
            A(mfma32(oo, VF + vb_cur * 8, sc, oo))
        for tag, txt in plan.get((p, ch), []):
            if 'v' in EXP: continue
            if 'd' in EXP and tag == 'dma': continue
            if 'a' in EXP and tag != 'dma': continue
            A(txt)
    assert e == 16 and c == 8

def advance_dma(A):
    A(f"s_add_u32 s67, s67, {SLOT}")
    A(f"s_cmp_eq_u32 s67, {3*SLOT}")
    A("s_cselect_b32 s67, 0, s67")
    A("s_add_u32 s64, s68, s67")
    A("s_add_u32 s65, s69, s67")
    A("s_add_u32 s66, s66, 10240")
    A("s_add_u32 s38, s38, 128")

def mainloop(A, G, tag):
    A("s_mov_b32 s36, 0")
    A.raw(".p2align 6")
    A.label(f"K2_LOOP{tag}")
    if 'b' not in EXP: A("s_barrier")
    advance_dma(A)
    A("s_cmp_ge_u32 s36, 6")
    A(f"s_cselect_b32 s98, 0, {WS_BYTES}")
    if G:
        A(f"s_cselect_b32 s22, 0, {2048*4096}")
        A("s_add_u32 s37, s37, 4096")
        A("s_cmp_eq_u32 s36, 7")
        A(f"s_cselect_b32 s42, 0, {WS_BYTES}")
    for p in range(8):
        phase(A, p, G)
    A(f"s_cmp_eq_u32 s67, {SLOT}")
    A(f"s_cselect_b32 s5, s6, {SLOT}")
    for r in [V_KA1, V_KA2, V_VA] + ([V_BAK + i for i in range(4)] if G else []):
        A(f"v_add_u32 v{r}, s5, v{r}")
    A("s_add_u32 s36, s36, 1")
    if not G:
        A("s_waitcnt vmcnt(3)")
    A("s_cmp_lt_u32 s36, 8")
    A(f"s_cbranch_scc1 K2_LOOP{tag}")

def max16(A, dst, sb, init=None):
    if init is None:
        A(f"v_max3_f32 v{dst}, v{sb}, v{sb+1}, v{sb+2}")
        rest = list(range(3, 16))
    else:
        rest = list(range(0, 16))
    while len(rest) >= 2:
        A(f"v_max3_f32 v{dst}, v{dst}, v{sb+rest[0]}, v{sb+rest[1]}")
        rest = rest[2:]
    if rest:
        A(f"v_max_f32 v{dst}, v{dst}, v{sb+rest[0]}")

def set_bias(A, m, slot, t):
    q2 = QF + slot * 6 + 4
    A(f"v_mov_b32 v{t}, v{m}")
    A("s_nop 1")
    A(f"v_permlane32_swap_b32 v{t}, v{m}")
    A("s_nop 1")
    A(f"v_max_f32 v{m}, v{m}, v{t}")
    A(f"v_sub_f32 v{m}, 0, v{m}")
    A(f"v_and_b32 v{t}, 0xffff0000, v{m}")
    A(f"v_sub_f32 v{t+1}, v{m}, v{t}")
    A(f"v_and_b32 v{t+2}, 0xffff0000, v{t+1}")
    A(f"v_sub_f32 v{t+3}, v{t+1}, v{t+2}")
    A(f"v_lshrrev_b32 v{t}, 16, v{t}")
    A(f"v_or_b32 v{t}, v{t}, v{t+2}")
    A(f"v_lshrrev_b32 v{t+3}, 16, v{t+3}")
    A(f"v_cndmask_b32 v{q2}, v{q2}, v{t}, s[44:45]")
    A(f"v_cndmask_b32 v{q2+1}, v{q2+1}, v{t+3}, s[44:45]")

def kv_global(A, soff):
    A(f"buffer_load_dwordx4 {vr(KF,4)}, v{V_L16}, s[16:19], {soff} offen")
    A("s_mov_b64 exec, s[34:35]")
    A(f"buffer_load_dwordx2 {vr(KF+4,2)}, v{V_KA2}, s[16:19], {soff} offen offset:1024")
    A("s_mov_b64 exec, s[32:33]")
    A(f"buffer_load_dwordx4 {vr(VF,4)}, v{V_VA}, s[16:19], {soff} offen offset:1280")
    A(f"buffer_load_dwordx4 {vr(VF+4,4)}, v{V_VA}, s[16:19], {soff} offen offset:1920")
    A("s_mov_b64 exec, -1")

def gen_k2(A, name, text_end_label):
    kernel_begin(A, name)
    A("s_cmp_ge_u32 s2, 256")
    A("s_cbranch_scc1 K2_EXIT")
    stamp_init(A, 1)
    A("s_load_dwordx4 s[8:11], s[0:1], 56")
    A("s_load_dwordx2 s[12:13], s[0:1], 104")
    A("s_getpc_b64 s[56:57]")
    A.label("K2_PC")
    A(f"s_mov_b32 s58, {text_end_label}-K2_PC")
    A("s_mov_b32 s59, 0x00020000")
    A(f"v_lshlrev_b32 v{V_T0}, 6, v0")
    A(f"buffer_load_dword v{V_PF}, v{V_T0}, s[56:59], 0 offen")
    A("s_and_b32 s3, s2, 7")
    A("s_lshr_b32 s4, s2, 3")
    A("s_lshl_b32 s28, s3, 2")
    A("s_lshr_b32 s5, s4, 3")
    A("s_add_u32 s28, s28, s5")
    A("s_and_b32 s29, s4, 7")
    A(f"v_lshrrev_b32 v{V_T0+1}, 6, v0")
    A(f"v_and_b32 v{V_LANE}, 63, v0")
    A(f"v_readfirstlane_b32 s30, v{V_T0+1}")
    A(f"v_and_b32 v{V_LM}, 31, v0")
    A(f"v_bfe_u32 v{V_H}, v0, 5, 1")
    A(f"v_lshlrev_b32 v{V_L16}, 4, v{V_LANE}")
    A("s_mov_b32 s32, 0xfffff")
    A("s_mov_b32 s33, 0xfffff")
    A("s_mov_b32 s34, -1")
    A("s_mov_b32 s35, 0")
    A("s_mov_b32 s44, 0")
    A("s_mov_b32 s45, -1")
    A("s_lshr_b32 s46, s30, 2")
    A("s_and_b32 s47, s30, 1")
    A("s_bfe_u32 s48, s30, 0x10001")
    A("s_lshr_b32 s49, s30, 1")
    A("s_lshl_b32 s50, s28, 1")
    A("s_add_u32 s50, s50, s47")
    A("s_lshl_b32 s51, s29, 2")
    A("s_lshl_b32 s5, s48, 1")
    A("s_add_u32 s51, s51, s5")
    A("s_add_u32 s51, s51, s46")
    A(f"v_lshlrev_b32 v{V_KA2}, 3, v{V_LM}")
    A(f"v_mul_u32_u24 v{V_VA}, 20, v{V_H}")
    A(f"v_add_u32 v{V_VA}, v{V_VA}, v{V_LM}")
    A(f"v_lshlrev_b32 v{V_VA}, 4, v{V_VA}")
    for i in range(16):
        A(f"v_mov_b32 v{VF+i}, 0x3f803f80")
    A(f"v_mov_b32 v{KF+4}, 0x3f803f80")
    A(f"v_mov_b32 v{KF+5}, 0x3f80")
    A("s_lshl_b32 s5, s50, 5")
    A("s_add_u32 s5, s5, s51")
    A("s_mul_i32 s52, s5, 1280")
    A("s_xor_b32 s5, s5, 1")
    A("s_mul_i32 s53, s5, 1280")
    A(f"s_mov_b32 s54, {KV_OFF}")
    A("s_mul_i32 s55, s46, 81920")
    A(f"s_add_u32 s55, s55, {KV_OFF}")
    A("s_waitcnt lgkmcnt(0)")
    srd(A, 16, 12, WS_BYTES)
    for slot in range(2):
        q = QF + slot * 6
        A(f"buffer_load_dwordx4 {vr(q,4)}, v{V_L16}, s[16:19], s{52+slot} offen")
        A(f"buffer_load_dwordx2 {vr(q+4,2)}, v{V_KA2}, s[16:19], s{52+slot} offen offset:1024")
    A(f"buffer_load_dwordx4 {vr(V_G0,4)}, v{V_L16}, s[16:19], s54 offen")
    A(f"buffer_load_dwordx2 {vr(V_G0+4,2)}, v{V_KA2}, s[16:19], s54 offen offset:1024")
    kv_global(A, "s55")
    srd(A, 40, 12, WS_BYTES)
    srd(A, 96, 12, WS_BYTES)
    srd(A, 20, 8, 2048 * 4096)
    srd(A, 24, 10, 4096)
    A("s_mul_i32 s68, s30, 2560")
    A("s_lshl_b32 s69, s30, 12")
    A(f"s_add_u32 s69, s69, {KVS}")
    A("s_mov_b32 s67, 0")
    A("s_mov_b32 s64, s68")
    A("s_mov_b32 s65, s69")
    A("s_and_b32 s5, s30, 3")
    A("s_add_u32 s5, s5, 1")
    A("s_mul_i32 s5, s5, 2560")
    A("s_add_u32 s66, s55, s5")
    A("s_mov_b32 s38, 0")
    A("s_mov_b32 s37, 0")
    A("s_cmp_eq_u32 s29, 7")
    A(f"s_cselect_b32 s42, 0, {WS_BYTES}")
    A(f"s_cselect_b32 s22, 0, {2048*4096}")
    for i in range(3): A(dma_kv(i))
    A("s_xor_b32 s5, s47, s48")
    A("s_lshl_b32 s7, s28, 1")
    A("s_add_u32 s5, s5, s7")
    A("s_lshl_b32 s5, s5, 17")
    A("s_lshl_b32 s7, s49, 10")
    A("s_add_u32 s5, s5, s7")
    A(f"v_lshrrev_b32 v{V_T0}, 3, v{V_LANE}")
    A(f"v_lshlrev_b32 v{V_T0}, 12, v{V_T0}")
    A(f"v_lshrrev_b32 v{V_T0+3}, 4, v{V_LANE}")
    A(f"v_and_b32 v{V_WD}, 7, v{V_LANE}")
    A(f"v_xor_b32 v{V_WD}, v{V_WD}, v{V_T0+3}")
    A(f"v_lshl_add_u32 v{V_WD}, v{V_WD}, 4, v{V_T0}")
    A(f"v_add_u32 v{V_WD}, s5, v{V_WD}")
    A(f"v_xor_b32 v{V_WD+1}, 64, v{V_WD}")
    for i in range(4): A(dma_w(i))
    A("s_lshl_b32 s5, s29, 2")
    A("s_lshl_b32 s6, s47, 1")
    A("s_add_u32 s5, s5, s6")
    A("s_lshr_b32 s6, s49, 1")
    A("s_add_u32 s60, s5, s6")
    A("s_xor_b32 s61, s60, 1")
    A("s_lshl_b32 s7, s49, 15")
    A(f"s_add_u32 s7, s7, {Z2_OFF}")
    for a in range(2):
        A(f"s_min_u32 s5, s{60+a}, 26")
        A("s_lshl_b32 s5, s5, 17")
        A("s_add_u32 s5, s5, s7")
        A(f"v_add_u32 v{V_GA+a}, s5, v{V_L16}")
    A("s_lshl_b32 s62, s28, 1")
    A("s_add_u32 s62, s62, s48")
    advance_dma(A)
    order = plan_order(True)
    for o in order: A(o[3])
    NV = len(order)
    A("s_mul_i32 s5, s46, 10240")
    A(f"v_add_u32 v{V_KA1}, s5, v{V_L16}")
    A(f"v_add_u32 v{V_KA2}, s5, v{V_KA2}")
    A(f"v_add_u32 v{V_VA}, s5, v{V_VA}")
    A("s_lshl_b32 s5, s49, 13")
    A(f"s_add_u32 s5, s5, {KVS}")
    A(f"v_bfe_u32 v{V_T0}, v{V_LM}, 1, 3")
    A(f"v_xor_b32 v{V_T0}, v{V_T0}, v{V_H}")
    A(f"v_lshlrev_b32 v{V_T0}, 4, v{V_T0}")
    A(f"v_lshl_add_u32 v{V_T0}, v{V_LM}, 7, v{V_T0}")
    for ks in range(4):
        A(f"v_xor_b32 v{V_BAK+ks}, {ks*32}, v{V_T0}")
        A(f"v_add_u32 v{V_BAK+ks}, s5, v{V_BAK+ks}")
    for i in range(32):
        A(f"v_mov_b32 v{O[0]+i}, 0")
    for i in range(64):
        A(f"v_mov_b32 v{GACC+i}, 0")
    A(f"s_mov_b32 s6, {(-2*SLOT) & 0xffffffff}")
    stamp(A, 1)
    A(f"s_waitcnt vmcnt({4 + 7 + NV})")
    stamp(A, 2)
    A(f"v_mov_b32 v{TT}, 0")
    for slot in range(2):
        q2 = QF + slot * 6 + 4
        A(f"v_cndmask_b32 v{q2}, v{q2}, v{TT}, s[44:45]")
        A(f"v_cndmask_b32 v{q2+1}, v{q2+1}, v{TT}, s[44:45]")
    A("s_nop 1")
    A(qk1(S[0], 0, V_G0)); A(qk2(S[0], 0, V_G0)); A(qk1(S[1], 1, V_G0)); A(qk2(S[1], 1, V_G0))
    A("s_nop 9")
    max16(A, TT, S[0])
    max16(A, TT + 1, S[1])
    set_bias(A, TT, 0, TT + 2)
    set_bias(A, TT + 1, 1, TT + 6)
    for i in range(4):
        A(f"v_mov_b32 v{S[1]+4+i}, 0")
    A(f"s_waitcnt vmcnt({7 + NV})")
    A(qk1(S[0], 0)); A(qk2(S[0], 0))
    A(f"s_waitcnt vmcnt({NV})")
    stamp(A, 3)
    A("s_nop 3")
    A("s_cmp_eq_u32 s29, 7")
    A("s_cbranch_scc1 K2_NOG")
    mainloop(A, True, "G")
    A("s_branch K2_EPI")
    A.label("K2_NOG")
    mainloop(A, False, "N")
    A.label("K2_EPI")
    stamp(A, 4)
    A(mfma32(O[1], VF + 8 + 4, S[1] + 4, O[1]))
    ZF = GA
    VBS, VG1, VG2 = GA + 8, GA + 9, GA + 10
    A("s_waitcnt vmcnt(0)")
    A("s_mul_i32 s5, s62, 54")
    A("s_min_u32 s6, s60, 26")
    A("s_lshl_b32 s6, s6, 1")
    A("s_add_u32 s5, s5, s6")
    A("s_lshl_b32 s5, s5, 10")
    A(f"s_add_u32 s5, s5, {Z1_OFF}")
    A(f"buffer_load_dwordx4 {vr(ZF,4)}, v{V_L16}, s[16:19], s5 offen")
    A(f"buffer_load_dwordx4 {vr(ZF+4,4)}, v{V_L16}, s[16:19], s5 offen offset:1024")
    A(f"v_lshlrev_b32 v{V_T0}, 1, v{V_LM}")
    A(f"v_lshlrev_b32 v{V_T0+1}, 2, v{V_LM}")
    A("s_lshl_b32 s5, s62, 6")
    A(f"buffer_load_ushort v{VBS}, v{V_T0}, s[24:27], s5 offen")
    A("s_lshl_b32 s5, s62, 7")
    A(f"s_add_u32 s5, s5, {GATE_OFF}")
    A(f"buffer_load_dword v{VG1}, v{V_T0+1}, s[16:19], s5 offen")
    A("s_lshl_b32 s5, s50, 7")
    A(f"s_add_u32 s5, s5, {GATE_OFF}")
    A(f"buffer_load_dword v{VG2}, v{V_T0+1}, s[16:19], s5 offen")
    A("s_barrier")
    A("s_xor_b32 s5, s30, 4")
    A("s_lshl_b32 s5, s5, 12")
    A("s_add_u32 s5, s5, 98304")
    A(f"v_add_u32 v{V_T0}, s5, v{V_L16}")
    A("s_cmp_eq_u32 s29, 7")
    A("s_cbranch_scc1 K2_NOGW")
    for sl in range(1, 4):
        A(f"s_xor_b32 s5, s30, {sl << 1}")
        A("s_mul_i32 s5, s5, 12288")
        A(f"v_add_u32 v{V_T0+sl}, s5, v{V_L16}")
        for q4 in range(4):
            A(f"ds_write_b128 v{V_T0+sl}, {vr(GACC+sl*16+4*q4,4)} offset:{(sl-1)*4096 + q4*1024}")
    A.label("K2_NOGW")
    for q4 in range(4):
        A(f"ds_write_b128 v{V_T0}, {vr(O[1]+4*q4,4)} offset:{q4*1024}")
    A("s_lshl_b32 s5, s4, 16")
    A(f"s_add_u32 s5, s5, {WP_OFF}")
    A(f"v_lshl_add_u32 v{V_T0+1}, v0, 7, s5")
    A(f"s_mov_b32 s42, {WP_OFF + 8*245760}")
    A(f"buffer_load_dword v{V_PF}, v{V_T0+1}, s[40:43], 0 offen")
    A("s_waitcnt lgkmcnt(0)")
    A("s_barrier")
    stamp(A, 5)
    A("s_lshl_b32 s5, s30, 12")
    A("s_add_u32 s5, s5, 98304")
    A(f"v_add_u32 v{V_T0}, s5, v{V_L16}")
    for q4 in range(4):
        A(f"ds_read_b128 {vr(O[1]+4*q4,4)}, v{V_T0} offset:{q4*1024}")
    A("s_waitcnt vmcnt(1)")
    A("s_cmp_ge_u32 s60, 27")
    A("s_cbranch_scc1 K2_OFIN")
    A("s_mul_i32 s5, s30, 12288")
    A(f"v_add_u32 v{V_T0+1}, s5, v{V_L16}")
    for i in range(12):
        A(f"ds_read_b128 {vr(GACC+16+4*i,4)}, v{V_T0+1} offset:{i*1024}")
    C, BC = TT, TT + 2
    A(f"v_sub_f32 v{C}, 1.0, v{VG1}")
    A(f"v_lshlrev_b32 v{VBS}, 16, v{VBS}")
    A(f"v_mov_b32 v{C+1}, v{C}")
    A(f"v_mul_f32 v{BC}, v{VBS}, v{C}")
    A(f"v_mov_b32 v{BC+1}, v{BC}")
    ZU = V_G0
    for i in range(8):
        A(f"v_lshlrev_b32 v{ZU+2*i}, 16, v{ZF+i}")
        A(f"v_and_b32 v{ZU+2*i+1}, 0xffff0000, v{ZF+i}")
    A("s_mul_i32 s5, s62, 94")
    A("s_lshl_b32 s6, s60, 1")
    A("s_add_u32 s5, s5, s6")
    A("s_lshl_b32 s5, s5, 10")
    A(f"s_add_u32 s5, s5, {ACT_OFF + 40*1024}")
    for sl in range(1, 4):
        A(f"s_waitcnt lgkmcnt({(3-sl)*4})")
        for i in range(8):
            A(f"v_pk_add_f32 {vr(GACC+2*i,2)}, {vr(GACC+2*i,2)}, {vr(GACC+sl*16+2*i,2)}")
    for i in range(8):
        A(f"v_pk_fma_f32 {vr(GACC+2*i,2)}, {vr(GACC+2*i,2)}, {vr(C,2)}, {vr(BC,2)}")
    for i in range(8):
        A(f"v_pk_mul_f32 {vr(GACC+2*i,2)}, {vr(GACC+2*i,2)}, {vr(ZU+2*i,2)}")
    for i in range(8):
        A(f"v_cvt_pk_bf16_f32 v{GACC+16+i}, v{GACC+2*i}, v{GACC+2*i+1}")
    A(f"buffer_store_dwordx4 {vr(GACC+16,4)}, v{V_L16}, s[16:19], s5 offen")
    A(f"buffer_store_dwordx4 {vr(GACC+20,4)}, v{V_L16}, s[16:19], s5 offen offset:1024")
    A.label("K2_OFIN")
    A("s_waitcnt lgkmcnt(0)")
    for i in range(7):
        A(f"v_pk_add_f32 {vr(O[0]+2*i,2)}, {vr(O[0]+2*i,2)}, {vr(O[1]+2*i,2)}")
    A(f"v_mov_b32 v{TT}, v{O[0]+12}")
    for i in range(12):
        A(f"v_fma_f32 v{TT}, v{O[0]+i}, 0, v{TT}")
    A(f"s_mov_b32 s5, {f32(2.0**60)}")
    A(f"v_cmp_ngt_f32 vcc, s5, v{TT}")
    if not EXP: A("s_cbranch_vccnz K2_FALLBACK")
    A.label("K2_OSTORE")
    A(f"v_rcp_f32 v{TT}, v{O[0]+12}")
    A("s_mul_i32 s5, s50, 94")
    A("s_lshl_b32 s5, s5, 10")
    A(f"s_add_u32 s5, s5, {ACT_OFF}")
    A(f"v_mul_f32 v{TT}, v{TT}, v{VG2}")
    A("s_mul_i32 s6, s51, 5")
    A(f"v_mov_b32 v{TT+1}, v{TT}")
    for i in range(6):
        A(f"v_pk_mul_f32 {vr(O[0]+2*i,2)}, {vr(O[0]+2*i,2)}, {vr(TT,2)}")
    for i in range(6):
        A(f"v_cvt_pk_bf16_f32 v{O[1]+i}, v{O[0]+2*i}, v{O[0]+2*i+1}")
    for j in range(3):
        if j < 2:
            A(f"v_lshl_add_u32 v{TT+2}, v{V_H}, 1, s6")
            if j: A(f"v_add_u32 v{TT+2}, 1, v{TT+2}")
        else:
            A("s_add_u32 s6, s6, 4")
            A(f"v_mov_b32 v{TT+2}, s6")
        A(f"v_lshrrev_b32 v{TT+3}, 1, v{TT+2}")
        A(f"v_lshlrev_b32 v{TT+3}, 9, v{TT+3}")
        A(f"v_and_b32 v{TT+2}, 1, v{TT+2}")
        A(f"v_lshl_add_u32 v{TT+3}, v{TT+2}, 3, v{TT+3}")
        A(f"v_lshl_add_u32 v{TT+4+j}, v{V_LM}, 4, v{TT+3}")
        if j == 2:
            A("s_mov_b64 exec, s[34:35]")
        A(f"buffer_store_dwordx2 {vr(O[1]+2*j,2)}, v{TT+4+j}, s[16:19], s5 offen")
    endpgm(A)
    A.label("K2_EXIT")
    A("s_endpgm")
    A.label("K2_FALLBACK")
    q2 = QF + 4
    A(f"v_mov_b32 v{TT}, 0")
    A(f"v_cndmask_b32 v{q2}, v{q2}, v{TT}, s[44:45]")
    A(f"v_cndmask_b32 v{q2+1}, v{q2+1}, v{TT}, s[44:45]")
    A(f"v_lshlrev_b32 v{V_KA2}, 3, v{V_LM}")
    A(f"v_mul_u32_u24 v{V_VA}, 20, v{V_H}")
    A(f"v_add_u32 v{V_VA}, v{V_VA}, v{V_LM}")
    A(f"v_lshlrev_b32 v{V_VA}, 4, v{V_VA}")
    A(f"v_mov_b32 v{TT}, 0xff800000")
    A(f"s_mov_b32 s54, {KV_OFF}")
    A.label("K2_FB1")
    kv_global(A, "s54")
    A("s_waitcnt vmcnt(0)")
    A(qk1(S[0], 0)); A(qk2(S[0], 0))
    A("s_nop 15")
    max16(A, TT, S[0], init=True)
    A("s_add_u32 s54, s54, 2560")
    A(f"s_cmp_lt_u32 s54, {KV_OFF + 163840}")
    A("s_cbranch_scc1 K2_FB1")
    set_bias(A, TT, 0, TT + 2)
    for i in range(16):
        A(f"v_mov_b32 v{O[0]+i}, 0")
    A(f"s_mov_b32 s54, {KV_OFF}")
    A.label("K2_FB2")
    kv_global(A, "s54")
    A("s_waitcnt vmcnt(0)")
    A(qk1(S[0], 0)); A(qk2(S[0], 0))
    A("s_nop 15")
    for i in range(16):
        A(f"v_exp_f32 v{S[0]+i}, v{S[0]+i}")
    A("s_nop 0")
    for i in range(8):
        A(f"v_cvt_pk_bf16_f32 v{S[0]+i}, v{S[0]+2*i}, v{S[0]+2*i+1}")
    A("s_nop 1")
    A(mfma32(O[0], VF, S[0], O[0]))
    A(mfma32(O[0], VF + 4, S[0] + 4, O[0]))
    A("s_add_u32 s54, s54, 2560")
    A(f"s_cmp_lt_u32 s54, {KV_OFF + 163840}")
    A("s_cbranch_scc1 K2_FB2")
    A("s_nop 15")
    A("s_branch K2_OSTORE")
```

```python
from asmlib import *

R = 4
NST = 12
SLOT = 20480
AB = R * SLOT
K3_LDS = AB + R * 16384
V_LANE = 1
ACC = 16
WF = 56
XF = 96
V_TRB = 112
V_ARD = 114
V_L16 = 116
V_PF = 117
RD = 120
K3_VGPR = 144

def issue_group(st):
    out = []
    slot = st % R
    out.append(f"s_add_u32 s41, s40, {st*8192}\ns_add_u32 m0, s53, {slot*16384}\ns_nop 0")
    for i in range(4):
        out.append(f"buffer_load_dwordx4 v{V_L16}, s[32:35], s41 offen offset:{i*1024} lds")
    out.append(f"s_add_u32 s42, s52, {st*SLOT}\ns_add_u32 m0, s52, {slot*SLOT}\ns_nop 0")
    for i in range(4):
        out.append(f"buffer_load_dwordx4 v{V_L16}, s[28:31], s42 offen offset:{i*1024} lds")
    out.append(f"s_add_u32 s42, s42, 4096\ns_add_u32 m0, s52, {slot*SLOT + 4096}\ns_nop 0")
    out.append(f"buffer_load_dwordx4 v{V_L16}, s[28:31], s42 offen lds")
    return out

def tr_reads(j, nt):
    st, jj = divmod(j, 2)
    slot = st % R
    base = V_TRB + slot // 2
    d = WF + (j % 2) * 20 + nt * 4
    o = (slot % 2) * SLOT + jj * 2 * 5120 + nt * 32
    return [f"ds_read_b64_tr_b16 {vr(d,2)}, v{base} offset:{o}",
            f"ds_read_b64_tr_b16 {vr(d+2,2)}, v{base} offset:{o + 1280}"]
def a_reads(j):
    st, jj = divmod(j, 2)
    return [f"ds_read_b128 {vr(XF + (j%2)*8 + sl*4, 4)}, v{V_ARD+sl} offset:{(st % R)*16384 + jj*4096}" for sl in range(2)]

def gen_k3(A, name, text_end_label):
    kernel_begin(A, name)
    A("s_cmp_ge_u32 s2, 256")
    A("s_cbranch_scc1 K3_EXIT")
    stamp_init(A, 2)
    A("s_load_dwordx2 s[12:13], s[0:1], 88")
    A("s_load_dwordx2 s[14:15], s[0:1], 104")
    A("s_getpc_b64 s[56:57]")
    A.label("K3_PC")
    A(f"s_mov_b32 s58, {text_end_label}-K3_PC")
    A("s_mov_b32 s59, 0x00020000")
    A("v_lshlrev_b32 v4, 7, v0")
    A(f"buffer_load_dword v{V_PF}, v4, s[56:59], 0 offen")
    A("s_and_b32 s3, s2, 7")
    A("s_lshr_b32 s4, s2, 3")
    A("s_lshl_b32 s24, s3, 2")
    A("s_lshr_b32 s5, s4, 3")
    A("s_add_u32 s24, s24, s5")
    A("s_and_b32 s25, s4, 7")
    A("v_lshrrev_b32 v5, 6, v0")
    A(f"v_and_b32 v{V_LANE}, 63, v0")
    A("v_readfirstlane_b32 s49, v5")
    A(f"v_and_b32 v2, 15, v0")
    A(f"v_bfe_u32 v3, v0, 4, 2")
    A(f"v_lshlrev_b32 v{V_L16}, 4, v{V_LANE}")
    A("s_and_b32 s26, s49, 3")
    A("s_and_b32 s27, s26, 1")
    A("s_lshr_b32 s44, s26, 1")
    A("s_lshl_b32 s45, s24, 1")
    A("s_add_u32 s45, s45, s27")
    A("s_mul_i32 s52, s26, 5120")
    A("s_cmp_lt_u32 s49, 4")
    A("s_cbranch_scc1 K3_COMPUTE")
    A(f"s_mul_i32 s40, s45, {94*1024}")
    A("s_lshl_b32 s6, s44, 12")
    A("s_add_u32 s40, s40, s6")
    A(f"s_add_u32 s40, s40, {ACT_OFF}")
    A("s_lshl_b32 s53, s27, 13")
    A("s_add_u32 s53, s53, s6")
    A(f"s_add_u32 s53, s53, {AB}")
    A("s_mul_i32 s5, s25, 245760")
    A(f"s_add_u32 s5, s5, {WP_OFF}")
    A("s_waitcnt lgkmcnt(0)")
    A("s_add_u32 s28, s14, s5")
    A("s_addc_u32 s29, s15, 0")
    A("s_mov_b32 s30, 240640")
    A("s_mov_b32 s31, 0x00020000")
    srd(A, 32, 14, WS_BYTES)
    LA = R - 1
    for st in range(LA):
        for s in issue_group(st): A(s)
    stamp(A, 1)
    for st in range(NST):
        hi = min(st - 1 + LA, NST - 1)
        A(f"s_waitcnt vmcnt({(hi - st) * 9})")
        A("s_barrier")
        if st == 0: stamp(A, 2)
        if st + LA < NST:
            for s in issue_group(st + LA): A(s)
    stamp(A, 3)
    A("s_branch K3_END")
    A.label("K3_COMPUTE")
    A(f"v_bfe_u32 v4, v{V_LANE}, 2, 2")
    A(f"v_bfe_u32 v6, v{V_LANE}, 4, 1")
    A("v_lshl_add_u32 v4, v6, 2, v4")
    A(f"v_bfe_u32 v6, v{V_LANE}, 5, 1")
    A("v_lshl_add_u32 v4, v6, 4, v4")
    A(f"v_mul_u32_u24 v{V_TRB}, 160, v4")
    A(f"v_and_b32 v4, 3, v{V_LANE}")
    A(f"v_lshl_add_u32 v{V_TRB}, v4, 3, v{V_TRB}")
    A("s_mul_i32 s5, s44, 5120")
    A(f"v_add_u32 v{V_TRB}, s5, v{V_TRB}")
    A(f"v_add_u32 v{V_TRB+1}, {2*SLOT}, v{V_TRB}")
    A("s_lshl_b32 s5, s27, 13")
    A("s_lshl_b32 s6, s44, 11")
    A("s_add_u32 s5, s5, s6")
    A(f"s_add_u32 s5, s5, {AB}")
    A("v_lshlrev_b32 v4, 9, v3")
    A("v_lshl_add_u32 v4, v2, 4, v4")
    A("s_lshl_b32 s6, s44, 8")
    A("s_add_u32 s7, s5, s6")
    A(f"v_add_u32 v{V_ARD}, s7, v4")
    A("s_xor_b32 s6, s6, 256")
    A("s_add_u32 s7, s5, s6")
    A(f"v_add_u32 v{V_ARD+1}, s7, v4")
    A("s_xor_b32 s5, s26, 2")
    A("s_mul_i32 s5, s5, 5120")
    A(f"v_add_u32 v8, s5, v{V_L16}")
    A(f"v_add_u32 v9, s52, v{V_L16}")
    A("s_lshl_b32 s5, s45, 5")
    A("s_lshl_b32 s6, s44, 4")
    A("s_add_u32 s5, s5, s6")
    A("v_add_u32 v7, s5, v2")
    A("s_movk_i32 s6, 1280")
    A("v_mul_lo_u32 v7, v7, s6")
    A("v_lshl_add_u32 v7, v3, 3, v7")
    A("s_mul_i32 s46, s25, 160")
    A("s_waitcnt lgkmcnt(0)")
    srd(A, 36, 12, 2048 * 1280)
    stamp(A, 1)
    A("s_barrier")
    stamp(A, 2)
    for r in a_reads(0): A(r)
    for nt in range(5):
        for r in tr_reads(0, nt): A(r)
    NJ = 2 * NST
    for j in range(NJ):
        st, jj = divmod(j, 2)
        last = (j == NJ - 1)
        boundary = (jj == 1 and not last)
        if last:
            A("s_cmp_eq_u32 s44, 1")
            A("s_cbranch_scc1 K3_LOOPEND")
        for nt in range(5):
            wf = WF + (j % 2) * 20 + nt * 4
            if boundary or last:
                if nt < 2 or last:
                    A(f"s_waitcnt lgkmcnt({(4-nt)*2})")
            else:
                A(f"s_waitcnt lgkmcnt({8 if nt == 0 else 10})")
            for sl in range(2):
                acc = ACC + sl * 20 + nt * 4
                xb = XF + (j % 2) * 8 + sl * 4
                c = "0" if j == 0 else vr(acc, 4)
                A(f"v_mfma_f32_16x16x32_bf16 {vr(acc,4)}, {vr(wf,4)}, {vr(xb,4)}, {c}")
            if boundary:
                if nt == 1:
                    A("s_waitcnt lgkmcnt(0)")
                    A("s_barrier")
                    for r in a_reads(j + 1): A(r)
                    for m2 in (0, 1):
                        for r in tr_reads(j + 1, m2): A(r)
                elif nt >= 2:
                    for r in tr_reads(j + 1, nt): A(r)
            elif not last:
                if nt == 0:
                    for r in a_reads(j + 1): A(r)
                for r in tr_reads(j + 1, nt): A(r)
    A.label("K3_LOOPEND")
    stamp(A, 3)
    A("s_nop 7")
    for nt in range(5):
        A(f"ds_write_b128 v8, {vr(ACC+20+nt*4,4)} offset:{nt*1024}")
    A("s_waitcnt lgkmcnt(0)")
    A("s_barrier")
    for nt in range(5):
        A(f"ds_read_b128 {vr(RD+nt*4,4)}, v9 offset:{nt*1024}")
    for nt in range(5):
        a = ACC + nt * 4
        A(f"s_waitcnt lgkmcnt({4-nt})")
        A(f"v_pk_add_f32 {vr(a,2)}, {vr(a,2)}, {vr(RD+nt*4,2)}")
        A(f"v_pk_add_f32 {vr(a+2,2)}, {vr(a+2,2)}, {vr(RD+nt*4+2,2)}")
        A(f"v_cvt_pk_bf16_f32 v{a}, v{a}, v{a+1}")
        A(f"v_cvt_pk_bf16_f32 v{a+1}, v{a+2}, v{a+3}")
        A(f"buffer_store_dwordx2 {vr(a,2)}, v7, s[36:39], s46 offen offset:{nt*32}")
    A.label("K3_END")
    endpgm(A)
    A.label("K3_EXIT")
    A("s_endpgm")
```

```python
import struct

def f32(x):
    return "0x%08x" % struct.unpack("<I", struct.pack("<f", x))[0]

class Asm:
    def __init__(self):
        self.lines = []
        self.nlabel = 0
    def __call__(self, s):
        for l in s.strip("\n").split("\n"):
            self.lines.append("    " + l.strip())
    def label(self, name):
        self.lines.append(name + ":")
    def raw(self, s):
        self.lines.append(s)
    def comment(self, s):
        self.lines.append("    ; " + s)
    def newlabel(self, p="L"):
        self.nlabel += 1
        return f"{p}_{self.nlabel}"
    def text(self):
        return "\n".join(self.lines) + "\n"

def vr(a, n):
    return f"v[{a}:{a+n-1}]" if n > 1 else f"v{a}"
def sr(a, n):
    return f"s[{a}:{a+n-1}]" if n > 1 else f"s{a}"

def kernel_begin(A, name):
    A.raw(f".globl {name}")
    A.raw(".p2align 8")
    A.raw(f".type {name},@function")
    A.label(name)

def kernel_desc(name, vgpr, sgpr=102, accum=None):
    if accum is None:
        accum = (vgpr + 3) // 4 * 4
    return f""".p2align 6
.amdhsa_kernel {name}
  .amdhsa_next_free_vgpr {vgpr}
  .amdhsa_next_free_sgpr {sgpr}
  .amdhsa_accum_offset {accum}
  .amdhsa_group_segment_fixed_size 0
  .amdhsa_kernarg_size 112
  .amdhsa_user_sgpr_count 2
  .amdhsa_user_sgpr_kernarg_segment_ptr 1
  .amdhsa_system_sgpr_workgroup_id_x 1
.end_amdhsa_kernel
"""

def srd(A, d, base, nbytes):
    A(f"s_mov_b32 s{d}, s{base}")
    A(f"s_mov_b32 s{d+1}, s{base+1}")
    A(f"s_mov_b32 s{d+2}, {nbytes}")
    A(f"s_mov_b32 s{d+3}, 0x00020000")

Q_OFF    = 0x000000
KV_OFF   = 0x280000
GATE_OFF = 0x2C0000
STAT_OFF = 0x2D0000
Z1_OFF   = 0x300000
Z2_OFF   = 0x680000
ACT_OFF  = 0xA00000
WP_OFF   = 0x1000000
Z2N_OFF  = 0x1200000
FLAG_OFF = 0x2F0000
WS_BYTES = 0x1600000

import os
PROF = os.environ.get("PROF", "0") == "1"
PROF_OFF = 0x1800000
def stamp_init(A, kidx, wave_sgpr_expr=None):
    if not PROF: return
    A("s_memrealtime s[70:71]")
    A("s_memtime s[72:73]")
    for i in range(1, 8):
        A(f"s_mov_b64 s[{72+2*i}:{73+2*i}], 0")
    A.kidx = kidx
def stamp(A, i):
    if not PROF: return
    A(f"s_memtime s[{72+2*i}:{73+2*i}]")
def endpgm(A):
    if PROF:
        A("s_mov_b64 exec, -1")
        A("s_waitcnt vmcnt(0)")
        A("s_memtime s[86:87]")
        A("s_memrealtime s[88:89]")
        A("s_load_dwordx2 s[92:93], s[0:1], 104")
        A("v_lshrrev_b32 v0, 6, v0")
        A("s_lshl_b32 s90, s2, 3")
        A("v_add_u32 v0, s90, v0")
        A("v_lshlrev_b32 v0, 6, v0")
        A(f"v_add_u32 v0, {PROF_OFF + A.kidx * 0x40000}, v0")
        A("s_waitcnt lgkmcnt(0)")
        A("s_mov_b32 s94, 0x2000000")
        A("s_mov_b32 s95, 0x00020000")
        vals = [70, 88] + [72 + 2 * i for i in range(8)]
        for j, sg in enumerate(vals):
            A(f"v_mov_b32 v1, s{sg}")
            A(f"buffer_store_dword v1, v0, s[92:95], 0 offen offset:{4*j}")
    A("s_endpgm")

def code_prefetch(A, tag, text_end_label, vt, vd):
    A("s_getpc_b64 s[56:57]")
    A.label(f"{tag}_PC")
    A(f"s_mov_b32 s58, {text_end_label}-{tag}_PC")
    A("s_mov_b32 s59, 0x00020000")
    A("s_lshr_b32 s5, s2, 3")
    A("s_lshl_b32 s5, s5, 12")
    A(f"v_lshrrev_b32 v{vt}, 5, v0")
    A(f"v_lshlrev_b32 v{vt}, 24, v{vt}")
    A(f"v_lshl_add_u32 v{vt}, v0, 7, v{vt}")
    A(f"v_add_u32 v{vt}, s5, v{vt}")
    A(f"buffer_load_dword v{vd}, v{vt}, s[56:59], 0 offen")
```

```python
from asmlib import *
import math, os

R = 4
NST = 10
SLOT = 20480
XB = R * SLOT
GATE_LDS = XB + 4 * R * 4096
TR_STRIDE = 304
K1_LDS = GATE_LDS + 2048
ROT = int(os.environ.get("K1ROT", "1"))
PRETOUCH = int(os.environ.get("K1PRE", "0"))
SC = " sc1" if os.environ.get("K1SC", "0") == "1" else ""
WSP_TOUCH = int(os.environ.get("K1TOUCH", "2"))

V_LANE, V_S, V_H = 1, 2, 3
V_PF = 15
ACC = 16
WF = 96
XF = 136
DMA_A = 144
DMA_LD = 154
V_TRB = 160
V_XRD = 164
V_XD = 168
V_GACC = 170
V_GADDR = 171
V_GBASE = 172
V_L16 = 173
V_GF = 176
T = 180

QSCALE = (20.0 ** -0.5) * math.log2(math.e)
C1 = -2.0 * math.sqrt(2.0 / math.pi) * math.log2(math.e)
C2 = C1 * 0.044715

def issue_group(st, first=False):
    out = []
    slot = st % R
    pre = ""
    if not first:
        pre = "s_add_u32 s62, s62, 128\ns_cmp_eq_u32 s62, 1280\ns_cselect_b32 s62, 0, s62\ns_cselect_b32 s63, s64, 64\n"
    for i in range(4):
        out.append(pre + f"s_add_u32 m0, s53, {slot*4096 + i*1024}\ns_add_u32 s65, s62, {i*10240}\n"
                   f"buffer_load_dwordx4 v{V_XD + i%2}, s[28:31], s65 offen lds")
        pre = ""
    for i in range(5):
        a = DMA_A + 2 * i
        s = ""
        if not first:
            s += f"v_mad_i64_i32 {vr(a,2)}, s[50:51], v{DMA_LD+i}, s63, {vr(a,2)}\n"
        s += f"s_add_u32 m0, s52, {slot*SLOT + i*1024}\n"
        s += "s_nop 0\n"
        s += f"global_load_lds_dwordx4 {vr(a,2)}, off"
        out.append(s)
    return out

def tr_reads(j, mt, qv):
    st, jj = divmod(j, 4)
    slot = st % R
    base = V_TRB + slot // 2
    d = WF + (j % 2) * 20 + mt * 4
    o = (slot % 2) * SLOT + jj * 16 * 320
    if qv:
        if mt == 4: base += 2
        else: o += mt * 80
    else:
        o += mt * 64
    return [f"ds_read_b64_tr_b16 {vr(d,2)}, v{base} offset:{o}",
            f"ds_read_b64_tr_b16 {vr(d+2,2)}, v{base} offset:{o + 4*320}"]

def x_read(j):
    st, jj = divmod(j, 4)
    return f"ds_read_b128 {vr(XF + (j%2)*4, 4)}, v{V_XRD+jj} offset:{(st % R)*4096}"

def gate_adv():
    return f"s_add_u32 s66, s66, 128\ns_cmp_eq_u32 s66, 1280\ns_cselect_b32 s66, 0, s66\nv_add_u32 v{V_GADDR}, s66, v{V_GBASE}"

BARJ = int(os.environ.get("K1BARJ", "2"))
def mainloop(A, qv):
    gate = qv
    g = 1 if gate else 0
    stamp(A, 1)
    A("s_barrier")
    stamp(A, 2)
    A(x_read(0))
    for mt in range(5):
        for r in tr_reads(0, mt, qv): A(r)
    if gate:
        A(f"ds_read_b128 {vr(V_GF,4)}, v{V_GADDR} offset:0")
    for j in range(40):
        st, jj = divmod(j, 4)
        xb = XF + (j % 2) * 4
        last = (j == 39)
        for mt in range(5):
            wf = WF + (j % 2) * 20 + mt * 4
            acc = ACC + mt * 16
            if last:
                A(f"s_waitcnt lgkmcnt({(4-mt)*2 + g})")
            elif mt == 0:
                A(f"s_waitcnt lgkmcnt({8 + g})")
            elif mt < 4:
                A(f"s_waitcnt lgkmcnt({9 + g})")
            else:
                A("s_waitcnt lgkmcnt(9)")
            c = "0" if j == 0 else vr(acc, 16)
            A(f"v_mfma_f32_32x32x16_bf16 {vr(acc,16)}, {vr(wf,4)}, {vr(xb,4)}, {c}")
            if not last:
                if mt == 0: A(x_read(j + 1))
                for r in tr_reads(j + 1, mt, qv): A(r)
            if gate and mt == 4:
                if last:
                    A("s_waitcnt lgkmcnt(0)")
                for e in range(4):
                    A(f"v_dot2c_f32_bf16 v{V_GACC}, v{xb+e}, v{V_GF+e}")
                if not last:
                    if jj == 3: A(gate_adv())
                    A(f"ds_read_b128 {vr(V_GF,4)}, v{V_GADDR} offset:{((j+1)%4)*32}")
            if jj == BARJ and mt == 4 and st < NST - 1:
                A("s_barrier")

def gelu_pairs(A, regs, tmp, vc1, vc2):
    bt = regs
    for i, r in enumerate(bt):
        A(f"v_pk_mul_f32 {vr(tmp+2*i,2)}, {vr(r,2)}, {vr(r,2)}")
    for i, r in enumerate(bt):
        A(f"v_pk_fma_f32 {vr(tmp+2*i,2)}, {vr(tmp+2*i,2)}, {vr(vc2,2)}, {vr(vc1,2)}")
    for i, r in enumerate(bt):
        A(f"v_pk_mul_f32 {vr(tmp+2*i,2)}, {vr(tmp+2*i,2)}, {vr(r,2)}")
    for i, r in enumerate(bt):
        A(f"v_exp_f32 v{tmp+2*i}, v{tmp+2*i}")
        A(f"v_exp_f32 v{tmp+2*i+1}, v{tmp+2*i+1}")
    for i, r in enumerate(bt):
        A(f"v_pk_add_f32 {vr(tmp+2*i,2)}, {vr(tmp+2*i,2)}, 1.0 op_sel_hi:[1,0]")
    for i, r in enumerate(bt):
        A(f"v_rcp_f32 v{tmp+2*i}, v{tmp+2*i}")
        A(f"v_rcp_f32 v{tmp+2*i+1}, v{tmp+2*i+1}")
    for i, r in enumerate(bt):
        A(f"v_pk_mul_f32 {vr(r,2)}, {vr(r,2)}, {vr(tmp+2*i,2)}")

def pack8(A, dst, src):
    for i in range(4):
        A(f"v_cvt_pk_bf16_f32 v{dst+i}, v{src+2*i}, v{src+2*i+1}")

def pi_perm(A, dst, src, t1, keep=0x13):
    A(f"v_and_b32 v{dst}, {keep}, v{src}")
    A(f"v_and_b32 v{t1}, 4, v{src}")
    A(f"v_lshl_or_b32 v{dst}, v{t1}, 1, v{dst}")
    A(f"v_bfe_u32 v{t1}, v{src}, 3, 1")
    A(f"v_lshl_or_b32 v{dst}, v{t1}, 2, v{dst}")

def gen_k1(A, name, text_end_label):
    kernel_begin(A, name)
    A("s_cmp_ge_u32 s2, 256")
    A("s_cbranch_scc1 K1_EXIT")
    stamp_init(A, 0)
    A("s_load_dwordx8 s[8:15], s[0:1], 0")
    A("s_load_dwordx4 s[16:19], s[0:1], 48")
    A("s_load_dwordx4 s[20:23], s[0:1], 96")
    A("s_load_dwordx4 s[44:47], s[0:1], 72")
    A("s_load_dwordx2 s[68:69], s[0:1], 32")
    code_prefetch(A, "K1", text_end_label, 4, V_PF)
    A("s_and_b32 s3, s2, 7")
    A("s_lshr_b32 s4, s2, 3")
    A("s_and_b32 s24, s3, 1")
    A("s_lshl_b32 s24, s24, 3")
    A("s_and_b32 s5, s4, 7")
    A("s_add_u32 s24, s24, s5")
    A("s_lshr_b32 s25, s3, 1")
    A("s_lshl_b32 s25, s25, 2")
    A("s_lshr_b32 s6, s4, 3")
    A("s_add_u32 s25, s25, s6")
    if ROT == 1:
        A("s_mul_i32 s5, s5, 5")
        A("s_mul_i32 s6, s6, 10")
        A("s_add_u32 s5, s5, s6")
        A("s_lshr_b32 s67, s5, 2")
        A("s_cmp_ge_u32 s67, 10")
        A("s_cselect_b32 s5, 10, 0")
        A("s_sub_u32 s67, s67, s5")
    elif ROT in (2, 4):
        A("s_add_u32 s5, s5, s6")
        A(f"s_and_b32 s5, s5, {ROT-1}")
        A("s_mul_i32 s5, s5, 10")
        A(f"s_lshr_b32 s67, s5, {ROT//2}")
    else:
        A("s_mov_b32 s67, 0")
    A("v_lshrrev_b32 v5, 6, v0")
    A(f"v_and_b32 v{V_LANE}, 63, v0")
    A("v_readfirstlane_b32 s49, v5")
    A(f"v_and_b32 v{V_S}, 31, v0")
    A(f"v_bfe_u32 v{V_H}, v0, 5, 1")
    A(f"v_lshlrev_b32 v{V_L16}, 4, v{V_LANE}")
    A("s_and_b32 s26, s49, 3")
    A("s_lshl_b32 s27, s24, 2")
    A("s_add_u32 s27, s27, s26")
    A(f"s_mul_i32 s53, s26, {R*4096}")
    A(f"s_add_u32 s53, s53, {XB}")
    A("s_lshl_b32 s62, s67, 7")
    A("s_mov_b32 s66, s62")
    A("s_mul_i32 s5, s24, 6")
    A("s_add_u32 s5, s5, s25")
    A("s_lshl_b32 s5, s5, 2")
    A("s_add_u32 s5, s5, s26")
    A("s_lshl_b32 s5, s5, 8")
    A(f"s_add_u32 s5, s5, {STAT_OFF - 10*1024}")
    A(f"v_lshl_add_u32 v7, v{V_S}, 3, s5")
    A("s_cmp_lt_u32 s49, 4")
    A("s_cbranch_scc1 K1_COMPUTE")
    A("s_lshl_b32 s5, s27, 5")
    A(f"v_lshrrev_b32 v4, 3, v{V_LANE}")
    A("v_add_u32 v4, s5, v4")
    A("s_movk_i32 s5, 1280")
    A("v_mul_lo_u32 v4, v4, s5")
    A(f"v_lshrrev_b32 v6, 4, v{V_LANE}")
    A(f"v_and_b32 v8, 7, v{V_LANE}")
    A("v_xor_b32 v6, v6, v8")
    A(f"v_lshl_add_u32 v{V_XD}, v6, 4, v4")
    A(f"v_xor_b32 v{V_XD+1}, 64, v{V_XD}")
    A("s_mul_i32 s52, s26, 5120")
    A("s_mov_b32 s64, -576")
    A("v_mov_b32 v8, 0")
    A("v_mov_b32 v9, -1")
    A("s_waitcnt lgkmcnt(0)")
    srd(A, 28, 8, 2048 * 1280)
    srd(A, 32, 22, WS_BYTES)
    srd(A, 36, 46, 1280)
    A("s_mov_b32 s60, s44")
    A("s_mov_b32 s61, s45")
    A("s_cmp_gt_u32 s26, 1")
    A("s_cbranch_scc1 K1_NOGATE")
    A("s_lshl_b32 s5, s26, 10")
    A(f"s_add_u32 m0, s5, {GATE_LDS}")
    A(f"v_add_u32 v4, s5, v{V_L16}")
    A("buffer_load_dwordx4 v4, s[36:39], 0 offen lds")
    A.label("K1_NOGATE")
    g0 = issue_group(0, first=True)
    for s in g0[:4]: A(s)
    A("s_cmp_ge_u32 s25, 4")
    A("s_cbranch_scc1 K1_ZBLK")
    A("s_mul_i32 s5, s25, 320")
    A("s_add_u32 s40, s10, s5")
    A("s_addc_u32 s41, s11, 0")
    A("s_movk_i32 s42, 1280")
    A("s_add_u32 s44, s40, 288")
    A("s_addc_u32 s45, s41, 0")
    A("s_add_u32 s46, s40, 304")
    A("s_addc_u32 s47, s41, 0")
    A("s_mov_b32 s48, s42")
    A("s_branch K1_PARAMS_DONE")
    A.label("K1_ZBLK")
    A("s_sub_u32 s5, s25, 4")
    A("s_mul_i32 s5, s5, 288")
    A("s_add_u32 s40, s16, s5")
    A("s_addc_u32 s41, s17, 0")
    A("s_movk_i32 s42, 3456")
    A("s_add_u32 s44, s40, 256")
    A("s_addc_u32 s45, s41, 0")
    A("s_add_u32 s46, s40, 272")
    A("s_addc_u32 s47, s41, 0")
    A("s_mov_b32 s48, s42")
    A("s_cmp_gt_u32 s25, 6")
    A("s_cbranch_scc1 K1_PARAMS_DONE")
    A("s_mov_b32 s48, 40")
    A("s_cmp_eq_u32 s25, 5")
    A("s_cbranch_scc1 K1_CB5")
    A("s_cmp_eq_u32 s25, 4")
    A("s_cselect_b32 s44, s12, s14")
    A("s_cselect_b32 s45, s13, s15")
    A("s_add_u32 s46, s44, 16")
    A("s_addc_u32 s47, s45, 0")
    A("s_branch K1_PARAMS_DONE")
    A.label("K1_CB5")
    A("s_add_u32 s44, s12, 24")
    A("s_addc_u32 s45, s13, 0")
    A("s_add_u32 s46, s14, 24")
    A("s_addc_u32 s47, s15, 0")
    A.label("K1_PARAMS_DONE")
    A("v_mov_b32 v8, s44")
    A("v_mov_b32 v9, s45")
    A("v_mov_b32 v10, s46")
    A("v_mov_b32 v11, s47")
    A("v_mov_b32 v12, s48")
    A("s_lshl_b32 s5, s26, 4")
    A("s_lshl_b32 s6, s67, 6")
    A("s_add_u32 s5, s5, s6")
    A("s_movk_i32 s6, 3277")
    for i in range(5):
        a = DMA_A + 2 * i
        A(f"v_add_u32 v4, {i*64}, v{V_LANE}")
        A("v_mul_u32_u24 v13, s6, v4")
        A("v_lshrrev_b32 v13, 16, v13")
        A("v_mul_u32_u24 v14, 20, v13")
        A("v_sub_u32 v4, v4, v14")
        A("v_add_u32 v13, s5, v13")
        A(f"v_mad_u64_u32 {vr(a,2)}, s[50:51], v4, 16, s[40:41]")
        A(f"v_mov_b32 v{DMA_LD+i}, s42")
        A("v_cmp_eq_u32 vcc, 18, v4")
        A("v_cmp_eq_u32 s[54:55], 19, v4")
        A("s_nop 0")
        A(f"v_cndmask_b32 v{a}, v{a}, v8, vcc")
        A(f"v_cndmask_b32 v{a+1}, v{a+1}, v9, vcc")
        A(f"v_cndmask_b32 v{DMA_LD+i}, v{DMA_LD+i}, v12, vcc")
        A(f"v_cndmask_b32 v{a}, v{a}, v10, s[54:55]")
        A(f"v_cndmask_b32 v{a+1}, v{a+1}, v11, s[54:55]")
        A(f"v_cndmask_b32 v{DMA_LD+i}, v{DMA_LD+i}, v12, s[54:55]")
        A(f"v_mad_u64_u32 {vr(a,2)}, s[50:51], v13, v{DMA_LD+i}, {vr(a,2)}")
        A(g0[4 + i])
    LA = int(os.environ.get("K1LA", "2"))
    for st in range(1, LA):
        for s in issue_group(st): A(s)
    stamp(A, 1)
    issued = LA - 1
    for b in range(NST):
        A(f"s_waitcnt vmcnt({(issued - b) * 9})")
        A("s_barrier")
        if b == 0: stamp(A, 2)
        allowed = R - 1 if b < 2 else b + R - 2
        want = min(allowed, b + LA, NST - 1)
        while issued < want:
            issued += 1
            for s in issue_group(issued): A(s)
    assert issued == NST - 1
    stamp(A, 3)
    A("s_lshl_b32 s5, s2, 2")
    A("s_add_u32 s5, s5, s26")
    A("s_lshl_b32 s5, s5, 3")
    A(f"s_add_u32 s5, s5, {FLAG_OFF}")
    A("v_mov_b32 v4, s5")
    A("v_mov_b32 v8, 0")
    A("v_mov_b32 v9, 0")
    A("s_mov_b64 exec, 1")
    A("buffer_store_dwordx2 v[8:9], v4, s[32:35], 0 offen")
    A("v_add_u32 v4, 8192, v4")
    A("buffer_store_dwordx2 v[8:9], v4, s[32:35], 0 offen")
    A("s_mov_b64 exec, -1")
    A("s_lshl_b32 s7, s2, 2")
    A("s_add_u32 s7, s7, s26")
    A("s_cmp_ge_u32 s7, 940")
    A("s_cbranch_scc1 K1_NOREP")
    A("s_cmp_lt_u32 s7, 400")
    A("s_cselect_b32 s36, s68, s60")
    A("s_cselect_b32 s37, s69, s61")
    A(f"s_mov_b32 s38, {864*1280}")
    A(f"s_cselect_b32 s38, {640*1280}, s38")
    A("s_cselect_b32 s5, 0, 400")
    A("s_sub_u32 s5, s7, s5")
    A("s_lshl_b32 s5, s5, 11")
    A(f"v_add_u32 v8, s5, v{V_L16}")
    RP = ACC
    for i in range(2):
        A(f"buffer_load_dwordx4 {vr(RP+4*i,4)}, v8, s[36:39], 0 offen offset:{i*1024}")
    A("s_lshl_b32 s5, s7, 7")
    A(f"v_add_u32 v8, s5, v{V_LANE}")
    A("s_mov_b32 s40, 53687092")
    A("s_movk_i32 s41, 6554")
    A("s_mov_b32 s42, 245760")
    A("s_movk_i32 s43, 3277")
    A("s_movk_i32 s44, 640")
    for i in range(2):
        A("v_mul_hi_u32 v9, v8, s40")
        A("v_mul_u32_u24 v10, 80, v9")
        A("v_sub_u32 v10, v8, v10")
        A("v_mul_u32_u24 v11, s41, v10")
        A("v_lshrrev_b32 v11, 16, v11")
        A("v_mul_u32_u24 v12, 10, v11")
        A("v_sub_u32 v10, v10, v12")
        A("v_mul_u32_u24 v12, s43, v9")
        A("v_lshrrev_b32 v12, 16, v12")
        A("v_mul_u32_u24 v13, 20, v12")
        A("v_sub_u32 v13, v9, v13")
        A("v_lshl_add_u32 v14, v12, 4, v13")
        A("v_lshl_add_u32 v12, v12, 2, v13")
        A("v_add_u32 v12, 496, v12")
        A("v_cmp_gt_u32 vcc, 16, v13")
        A("s_nop 1")
        A("v_cndmask_b32 v12, v12, v14, vcc")
        A("v_cmp_gt_u32 vcc, s44, v9")
        A("s_nop 1")
        A("v_cndmask_b32 v9, v9, v12, vcc")
        pi_perm(A, 12, 9, 13, keep="0xfffffff3")
        A("v_mul_u32_u24 v12, 160, v12")
        A("v_lshl_add_u32 v12, v10, 4, v12")
        A("v_mad_u32_u24 v12, v11, s42, v12")
        A(f"v_add_u32 v{RP+8+i}, {WP_OFF}, v12")
        A("v_add_u32 v8, 64, v8")
    A("s_waitcnt vmcnt(0)")
    for i in range(2):
        A(f"buffer_store_dwordx4 {vr(RP+4*i,4)}, v{RP+8+i}, s[32:35], 0 offen{SC}")
    A.label("K1_NOREP")
    if WSP_TOUCH:
        srd(A, 96, 18, 2048 * 4096)
        n = 8 * WSP_TOUCH
        A("s_lshl_b32 s5, s4, 2")
        A("s_add_u32 s5, s5, s26")
        A("s_lshl_b32 s5, s5, 13")
        A("s_lshl_b32 s6, s3, 20")
        A("s_add_u32 s5, s5, s6")
        A(f"v_and_b32 v8, 7, v{V_LANE}")
        A(f"v_lshrrev_b32 v9, 3, v{V_LANE}")
        A("v_lshlrev_b32 v8, 10, v8")
        A("v_lshl_add_u32 v8, v9, 7, v8")
        A("v_add_u32 v8, s5, v8")
        A(f"s_mov_b32 exec_lo, {hex((1 << min(n, 32)) - 1)}")
        A(f"s_mov_b32 exec_hi, {hex((1 << max(n - 32, 0)) - 1)}")
        A(f"buffer_load_dword v{V_PF}, v8, s[96:99], 0 offen")
    A("s_branch K1_END")
    A.label("K1_COMPUTE")
    if PRETOUCH:
        A("s_and_b32 s5, s26, 1")
        A("s_cmp_eq_u32 s5, 0")
        A("s_cbranch_scc0 K1_TW")
        A("s_lshr_b32 s5, s4, 3")
        A("s_lshl_b32 s6, s24, 2")
        A("s_add_u32 s5, s5, s6")
        A("s_lshl_b32 s5, s5, 5")
        A(f"v_add_u32 v8, s5, v{V_S}")
        A("s_movk_i32 s5, 1280")
        A("v_mul_lo_u32 v8, v8, s5")
        A(f"v_lshl_add_u32 v8, v{V_H}, 7, v8")
        A("s_movk_i32 s7, 256")
        A("s_waitcnt lgkmcnt(0)")
        srd(A, 28, 8, 2048 * 1280)
        A("s_branch K1_TGO")
        A.label("K1_TW")
        A("s_cmp_lt_u32 s25, 4")
        A("s_cselect_b32 s40, 1280, s25")
        A("s_cselect_b32 s40, s40, 3456")
        A("s_cselect_b32 s41, 320, s25")
        A("s_cselect_b32 s41, s41, 288")
        A("s_cselect_b32 s5, 0, 4")
        A("s_sub_u32 s5, s25, s5")
        A("s_mul_i32 s42, s5, s41")
        A("s_sub_u32 s41, s41, 4")
        A(f"v_lshrrev_b32 v8, 2, v{V_LANE}")
        A("s_and_b32 s5, s4, 7")
        A("v_lshl_add_u32 v8, v8, 3, s5")
        A("v_mul_lo_u32 v8, v8, s40")
        A(f"v_and_b32 v9, 3, v{V_LANE}")
        A("v_lshlrev_b32 v9, 7, v9")
        A("v_min_u32 v9, s41, v9")
        A("v_add3_u32 v8, v8, v9, s42")
        A("s_lshl_b32 s7, s40, 7")
        A("s_waitcnt lgkmcnt(0)")
        A("s_cmp_lt_u32 s25, 4")
        A("s_cselect_b32 s28, s10, s16")
        A("s_cselect_b32 s29, s11, s17")
        A("s_mul_i32 s30, s40, 640")
        A("s_mov_b32 s31, 0x00020000")
        A.label("K1_TGO")
        A("s_lshr_b32 s5, s26, 1")
        A("s_mul_i32 s5, s5, s7")
        A("v_add_u32 v8, s5, v8")
        A("s_lshl_b32 s7, s7, 1")
        A(f"buffer_load_dword v{V_PF}, v8, s[28:31], 0 offen")
        A("v_add_u32 v8, s7, v8")
        A(f"buffer_load_dword v{V_PF}, v8, s[28:31], 0 offen")
        A("s_cmp_ge_u32 s26, 2")
        A("s_cbranch_scc1 K1_TDONE")
        A("v_add_u32 v8, s7, v8")
        A(f"buffer_load_dword v{V_PF}, v8, s[28:31], 0 offen")
        A.label("K1_TDONE")
    else:
        A("s_waitcnt lgkmcnt(0)")
    A("s_lshl_b32 s5, s27, 5")
    A(f"v_add_u32 v6, s5, v{V_S}")
    A(f"v_bfe_u32 v4, v{V_LANE}, 2, 2")
    A(f"v_lshl_add_u32 v4, v{V_H}, 3, v4")
    A("v_mul_u32_u24 v4, 320, v4")
    A(f"v_bfe_u32 v8, v{V_LANE}, 4, 1")
    A(f"v_and_b32 v9, 1, v{V_LANE}")
    A(f"v_bfe_u32 v10, v{V_LANE}, 1, 1")
    A("v_lshl_add_u32 v9, v9, 1, v10")
    A("s_cmp_lt_u32 s25, 4")
    A("s_cselect_b32 s5, 40, 32")
    A("v_mul_u32_u24 v10, s5, v8")
    A("v_add_u32 v10, v10, v4")
    A(f"v_lshl_add_u32 v{V_TRB}, v9, 3, v10")
    A(f"v_add_u32 v{V_TRB+1}, {2*SLOT}, v{V_TRB}")
    A("v_lshl_add_u32 v10, v8, 2, v9")
    A("v_mul_u32_u24 v10, 40, v10")
    A(f"v_add3_u32 v{V_TRB+2}, v10, v4, 32")
    A(f"v_add_u32 v{V_TRB+3}, {2*SLOT}, v{V_TRB+2}")
    A(f"v_bfe_u32 v4, v{V_S}, 1, 3")
    A(f"v_xor_b32 v4, v4, v{V_H}")
    A("v_lshlrev_b32 v4, 4, v4")
    A(f"v_lshl_add_u32 v4, v{V_S}, 7, v4")
    for jj in range(4):
        A(f"v_xor_b32 v{V_XRD+jj}, {jj*32}, v4")
        A(f"v_add_u32 v{V_XRD+jj}, s53, v{V_XRD+jj}")
    A(f"v_lshlrev_b32 v{V_GBASE}, 4, v{V_H}")
    A(f"v_add_u32 v{V_GBASE}, {GATE_LDS}, v{V_GBASE}")
    A(f"v_add_u32 v{V_GADDR}, s66, v{V_GBASE}")
    A(f"v_mov_b32 v{V_GACC}, 0")
    vc1, vc2 = T, T + 2
    A(f"v_mov_b32 v{vc1}, {f32(C1)}")
    A(f"v_mov_b32 v{vc1+1}, {f32(C1)}")
    A(f"v_mov_b32 v{vc2}, {f32(C2)}")
    A(f"v_mov_b32 v{vc2+1}, {f32(C2)}")
    srd(A, 32, 22, WS_BYTES)
    A("s_cmp_lt_u32 s25, 4")
    A("s_cbranch_scc1 K1_LOOP_Q")
    mainloop(A, qv=False)
    stamp(A, 3)
    A("s_nop 3")
    regs = [ACC + 2 * i for i in range(36)]
    A("s_cmp_ge_u32 s25, 10")
    A("s_cbranch_scc1 K1_EPI_Z2")
    A("s_mul_i32 s5, s27, 54")
    A("s_sub_u32 s6, s25, 4")
    A("s_mul_i32 s6, s6, 9")
    A("s_add_u32 s5, s5, s6")
    A("s_lshl_b32 s5, s5, 10")
    A(f"s_add_u32 s5, s5, {Z1_OFF}")
    A(f"v_add_u32 v4, s5, v{V_L16}")
    for G in range(9):
        gelu_pairs(A, regs[4 * G:4 * G + 4], T + 8, vc1, vc2)
        d = T + 16 + (G % 8) * 4
        pack8(A, d, ACC + 8 * G)
        if G % 4 == 0 and G > 0:
            A(f"v_add_u32 v4, 4096, v4")
        A(f"buffer_store_dwordx4 {vr(d,4)}, v4, s[32:35], 0 offen offset:{(G%4)*1024}{SC}")
    A("s_cmp_gt_u32 s25, 6")
    A("s_cbranch_scc1 K1_END")
    SP = ACC + 72
    d = T + 64
    pack8(A, d, SP)
    A("s_mul_i32 s5, s27, 2560")
    A(f"s_add_u32 s5, s5, {KV_OFF}")
    pi_perm(A, 8, V_S, 9)
    A(f"v_bfe_u32 v9, v{V_S}, 4, 1")
    A("v_mul_u32_u24 v10, 640, v9")
    A(f"v_bfe_u32 v9, v{V_S}, 3, 1")
    A("v_mul_u32_u24 v9, 320, v9")
    A("v_add_u32 v10, v10, v9")
    A(f"v_and_b32 v9, 7, v{V_S}")
    A("v_lshl_add_u32 v10, v9, 1, v10")
    A("v_add_u32 v10, s5, v10")
    A("s_cmp_eq_u32 s25, 5")
    A("s_cbranch_scc1 K1_SP5")
    A("s_cmp_eq_u32 s25, 6")
    A("s_cbranch_scc1 K1_SP6")
    A(f"v_lshl_add_u32 v9, v{V_H}, 5, v8")
    A("v_lshl_add_u32 v9, v9, 4, s5")
    A(f"buffer_store_dwordx4 {vr(d,4)}, v9, s[32:35], 0 offen")
    A("s_branch K1_END")
    A.label("K1_SP5")
    A("v_lshl_add_u32 v9, v8, 3, s5")
    A("s_mov_b32 exec_hi, 0")
    A(f"buffer_store_dwordx2 {vr(d+2,2)}, v9, s[32:35], 0 offen offset:1024")
    A("s_mov_b32 exec_hi, -1")
    A("s_mov_b32 exec_lo, 0")
    for e in range(4):
        op = "buffer_store_short_d16_hi" if e % 2 else "buffer_store_short"
        A(f"{op} v{d+2+e//2}, v10, s[32:35], 0 offen offset:{1280 + (16+e)*16}")
    A("s_branch K1_END")
    A.label("K1_SP6")
    A(f"v_lshl_add_u32 v10, v{V_H}, 6, v10")
    for e in range(8):
        op = "buffer_store_short_d16_hi" if e % 2 else "buffer_store_short"
        m = (e & 3) | ((e >> 2) << 3)
        A(f"{op} v{d+e//2}, v10, s[32:35], 0 offen offset:{1280 + m*16}")
    A("s_branch K1_END")
    A.label("K1_EPI_Z2")
    SUM, SQ = T + 4, T + 6
    A(f"v_mul_u32_u24 v14, {TR_STRIDE}, v{V_S}")
    A(f"v_lshl_add_u32 v14, v{V_H}, 4, v14")
    A("v_add_u32 v14, s53, v14")
    TA, TB = T + 60, T + 61
    A(f"v_lshrrev_b32 v13, 4, v{V_LANE}")
    A(f"v_bfe_u32 v{TA}, v{V_LANE}, 2, 2")
    A(f"v_lshl_add_u32 v{TA}, v13, 3, v{TA}")
    A(f"v_mul_u32_u24 v{TA}, {TR_STRIDE}, v{TA}")
    A(f"v_and_b32 v10, 1, v{V_LANE}")
    A(f"v_lshl_add_u32 v{TA}, v10, 4, v{TA}")
    A(f"v_bfe_u32 v10, v{V_LANE}, 1, 1")
    A(f"v_lshl_add_u32 v{TA}, v10, 3, v{TA}")
    A(f"v_add_u32 v{TA}, s53, v{TA}")
    A(f"v_lshlrev_b32 v{TB}, 9, v13")
    A(f"v_and_b32 v10, 15, v{V_LANE}")
    A(f"v_lshl_add_u32 v{TB}, v10, 4, v{TB}")
    A("s_lshl_b32 s6, s27, 11")
    A(f"s_add_u32 s6, s6, {Z2_OFF}")
    A(f"v_add_u32 v{TB}, s6, v{TB}")
    A("s_sub_u32 s7, s25, 10")
    A("s_mul_i32 s7, s7, 9")
    D = T + 16
    def st(G):
        a = ACC + 4 * G
        A(f"s_add_u32 s5, s7, {G}")
        A("s_lshr_b32 s6, s5, 1")
        A("s_lshl_b32 s6, s6, 17")
        A("s_and_b32 s5, s5, 1")
        A("s_lshl_b32 s5, s5, 8")
        A("s_add_u32 s5, s5, s6")
        A(f"buffer_store_dwordx4 {vr(a,4)}, v{TB}, s[32:35], s5 offen{SC}")
    for G in range(9):
        gelu_pairs(A, regs[4 * G:4 * G + 4], T + 8, vc1, vc2)
        for i, r in enumerate(regs[4 * G:4 * G + 4]):
            if G == 0 and i == 0:
                A(f"v_pk_mul_f32 {vr(SQ,2)}, {vr(r,2)}, {vr(r,2)}")
                A(f"v_mov_b32 v{SUM}, v{r}")
                A(f"v_mov_b32 v{SUM+1}, v{r+1}")
            else:
                A(f"v_pk_add_f32 {vr(SUM,2)}, {vr(SUM,2)}, {vr(r,2)}")
                A(f"v_pk_fma_f32 {vr(SQ,2)}, {vr(r,2)}, {vr(r,2)}, {vr(SQ,2)}")
        pack8(A, D + 4 * G, ACC + 8 * G)
        if G >= 1:
            A("s_waitcnt lgkmcnt(0)")
            st(G - 1)
        A(f"ds_write_b128 v14, {vr(D+4*G,4)} offset:{G*32}")
        a = ACC + 4 * G
        A(f"ds_read_b64_tr_b16 {vr(a,2)}, v{TA} offset:{G*32}")
        A(f"ds_read_b64_tr_b16 {vr(a+2,2)}, v{TA} offset:{G*32 + 4*TR_STRIDE}")
    stamp(A, 4)
    A(f"v_add_f32 v8, v{SUM}, v{SUM+1}")
    A(f"v_add_f32 v9, v{SQ}, v{SQ+1}")
    A("v_mov_b32 v10, v8")
    A("v_mov_b32 v11, v9")
    A("s_nop 1")
    A("v_permlane32_swap_b32 v8, v10")
    A("v_permlane32_swap_b32 v9, v11")
    A("s_nop 1")
    A("v_add_f32 v8, v8, v10")
    A("v_add_f32 v9, v9, v11")
    A("buffer_store_dwordx2 v[8:9], v7, s[32:35], 0 offen")
    A("s_waitcnt lgkmcnt(0)")
    st(8)
    A.label("K1_END")
    endpgm(A)
    A.label("K1_EXIT")
    A("s_endpgm")
    A.label("K1_LOOP_Q")
    mainloop(A, qv=True)
    stamp(A, 3)
    A("s_nop 3")
    A(f"v_mov_b32 v4, v{V_GACC}")
    A("s_nop 1")
    A(f"v_permlane32_swap_b32 v4, v{V_GACC}")
    A("s_nop 1")
    A(f"v_add_f32 v4, v4, v{V_GACC}")
    A(f"v_mul_f32 v4, {f32(-math.log2(math.e))}, v4")
    A("v_exp_f32 v4, v4")
    A("s_nop 0")
    A("v_add_f32 v4, 1.0, v4")
    A("v_rcp_f32 v4, v4")
    A("v_lshlrev_b32 v5, 2, v6")
    A(f"v_add_u32 v5, {GATE_OFF}, v5")
    A("s_cmp_lg_u32 s25, 0")
    A("s_cbranch_scc1 K1_NOGST")
    A("buffer_store_dword v4, v5, s[32:35], 0 offen")
    A.label("K1_NOGST")
    A(f"s_mov_b32 s40, {f32(QSCALE)}")
    A(f"s_mov_b32 s41, {f32(QSCALE)}")
    A("s_lshl_b32 s5, s27, 5")
    A("s_lshl_b32 s6, s25, 3")
    A("s_add_u32 s5, s5, s6")
    A("s_mul_i32 s5, s5, 1280")
    A(f"v_mul_u32_u24 v10, 2560, v{V_H}")
    A(f"v_lshl_add_u32 v10, v{V_S}, 3, v10")
    for mt in range(5):
        for g in range(2):
            a = ACC + mt * 16 + g * 8
            d = T + ((mt * 2 + g) % 8) * 4
            for i in range(4):
                A(f"v_pk_mul_f32 {vr(a+2*i,2)}, {vr(a+2*i,2)}, s[40:41]")
            pack8(A, d, a)
            if mt < 4:
                A(f"s_add_u32 s6, s5, {Q_OFF + (2*mt+g)*1280}")
                A(f"buffer_store_dwordx4 {vr(d,4)}, v{V_L16}, s[32:35], s6 offen{SC}")
            else:
                A(f"s_add_u32 s6, s5, {Q_OFF + 4*g*1280}")
                A(f"buffer_store_dwordx2 {vr(d,2)}, v10, s[32:35], s6 offen offset:1024")
                A(f"buffer_store_dwordx2 {vr(d+2,2)}, v10, s[32:35], s6 offen offset:{1024+1280}")
    A("s_branch K1_END")
```

```python
from asmlib import *
import math, os
WNT = ' nt' if os.environ.get('K2WNT') else ''
OMAP = int(os.environ.get('K2OMAP', '1'))
FPRIO = int(os.environ.get('K2FPRIO', '1'))
PRIO = int(os.environ.get('K2PRIO', '1'))
ASC = {'0': '', 'nt': ' sc1 nt'}.get(os.environ.get('K2ASC'), ' sc1')

K2_LDS = 163840
KVH = 30720
WB = 2 * KVH
SCR = WB + 4 * 24576
V_LANE, V_LM, V_H = 1, 2, 3
V_KA1, V_KA2, V_VA = 4, 5, 6
V_GA = 7
V_WD = 9
V_L16 = 11
V_T0 = 12
S = [16, 32]
O = [48, 64]
GACC = 80
GA = 144
GB = 176
V_BAK = 184
VBS, VG1, VG2 = 188, 189, 190
V_L2 = 191
V_G0 = 192
ZF = 200
KF = 208
V_PF = 214
V_L4 = 215
VF = 216
QF = 232
TT = 244

SEQ = {0: "eeeBceece1eceec2eeceeceeceAc",
       2: "eeeBceec1eece2eceegceecgeeceAc",
       3: "eeeBcee1ceec2eecgeecegeceegceAc"}
for k_, v_ in SEQ.items():
    assert "".join(c for c in v_ if c in "ec") == "eee" + "cee" * 6 + "ce" + "c" and v_.count("g") == k_, k_

def mfma32(d, a, b, c):
    return f"v_mfma_f32_32x32x16_bf16 {vr(d,16)}, {vr(a,4)}, {vr(b,4)}, {c if c == '0' else vr(c,16)}"
def qk1(sb, slot, kf=KF): return mfma32(sb, kf, QF + slot * 6, "0")
def qk2(sb, slot, kf=KF): return f"v_mfma_f32_32x32x8_bf16 {vr(sb,16)}, {vr(kf+4,2)}, {vr(QF+slot*6+4,2)}, {vr(sb,16)}"

class Em:
    def __init__(self, A, vm=()):
        self.A = A; self.vm = list(vm); self.lg = []
    def v(self, tag, txt): self.A(txt); self.vm.append(tag)
    def l(self, tag, txt): self.A(txt); self.lg.append(tag)
    STORES = ("pub", "flag")
    def wait(self, vtags=(), ltags=()):
        parts = []
        for q, tags, nm, mx in ((self.vm, vtags, "vmcnt", 62), (self.lg, ltags, "lgkmcnt", 14)):
            idx = [i for i, t in enumerate(q) if t in tags]
            if idx:
                younger = q[max(idx) + 1:]
                n = min(sum(1 for t in younger if t not in self.STORES), mx)
                parts.append(f"{nm}({n})")
                keepst = [t for t in q[:max(idx) + 1] if t in self.STORES] if n else []
                q[:] = (keepst + (younger if nm == 'vmcnt' else younger[-n:])) if n else []
        if parts: self.A("s_waitcnt " + " ".join(parts))

def epoch_of(p): return 0 if p < 4 else (p - 4) // 6 + 1
def epoch_start(e): return 0 if e == 0 else 4 + 6 * (e - 1)

def dma_kv(E, c, i):
    pre = f"s_add_u32 m0, s64, {(c % 4) * 7680}\ns_add_u32 s39, s66, {c * 7680}\n"
    if i == 0:
        E.v(f"kv{c}", pre + f"buffer_load_dwordx4 v{V_L16}, s[16:19], s39 offen lds")
    else:
        E.v(f"kv{c}", pre + f"s_mov_b64 exec, s[68:69]\nbuffer_load_dwordx4 v{V_L16}, s[16:19], s39 offen offset:1024 lds\ns_mov_b64 exec, -1")
def dma_w(E, bt, i):
    E.v(f"w{bt}", f"s_add_u32 m0, s65, {(bt % 3) * 8192 + i * 1024}\ns_mov_b32 s39, {bt * 128 + i * 32768}\n"
        f"buffer_load_dwordx4 v{V_WD + i % 2}, s[20:23], s39 offen{WNT} lds")
def loadA(E, bt, ks, a):
    pre = f"s_mov_b32 s37, {bt * 4096}\n"
    E.v(f"A{bt}_{ks}_{a}", pre + f"buffer_load_dwordx4 {vr(GA+ks*8+a*4,4)}, v{V_GA+a}, s[16:19], s37 offen offset:{ks*1024}{ASC}")

def g_ops():
    ops = []
    for bt in range(7):
        for ks in range(4):
            for b in range(2):
                ops += [(bt, ks, 0, b), (bt, ks, 1, b)]
    for ks in range(4): ops += [(7, ks, 0, 1), (7, ks, 1, 1)]
    ops += [(7, ks, 1, 0) for ks in range(4)] + [(7, ks, 0, 0) for ks in range(4)]
    return ops

def normalise(A, E):
    R = GACC; P = GACC + 8; AB = GACC + 16
    t = TT
    E.wait(vtags=("nrm",))
    A(f"v_add_f32 v{t}, v{P}, v{P+2}")
    A(f"v_add_f32 v{t+1}, v{P+1}, v{P+3}")
    A(f"v_add_f32 v{t}, v{t}, v{P+4}")
    A(f"v_add_f32 v{t+1}, v{t+1}, v{P+5}")
    A(f"v_mov_b32 v{t+2}, v{t}")
    A(f"v_mov_b32 v{t+3}, v{t+1}")
    A("s_nop 1")
    A(f"v_permlane32_swap_b32 v{t}, v{t+2}")
    A(f"v_permlane32_swap_b32 v{t+1}, v{t+3}")
    A("s_nop 1")
    A(f"v_add_f32 v{t}, v{t}, v{t+2}")
    A(f"v_add_f32 v{t+1}, v{t+1}, v{t+3}")
    A(f"v_mul_f32 v{t}, {f32(1.0/864)}, v{t}")
    A(f"v_mul_f32 v{t+1}, {f32(1.0/864)}, v{t+1}")
    A(f"v_fma_f32 v{t+1}, -v{t}, v{t}, v{t+1}")
    A(f"v_max_f32 v{t+1}, 0, v{t+1}")
    A(f"v_add_f32 v{t+1}, {f32(1e-5)}, v{t+1}")
    A(f"v_rsq_f32 v{t+2}, v{t+1}")
    A("s_lshl_b32 s5, s30, 8")
    A(f"s_add_u32 s5, s5, {SCR}")
    A(f"v_mul_f32 v{t+3}, v{t}, v{t+2}")
    A(f"v_sub_f32 v{t+3}, 0, v{t+3}")
    A(f"v_cndmask_b32 v{t+2}, v{t+2}, v{t+3}, s[44:45]")
    A(f"v_lshl_add_u32 v{t+4}, v{V_LANE}, 2, s5")
    A(f"v_lshl_add_u32 v{t+5}, v{V_H}, 5, s5")
    E.l("sw", f"ds_write_b32 v{t+4}, v{t+2}")
    for ab in range(2):
        for i in range(2):
            for q in range(2):
                E.l("sr", f"ds_read_b128 {vr(AB + ab*16 + i*8 + q*4, 4)}, v{t+5} offset:{ab*128 + i*64 + q*16}")
    U = GACC + 48
    for i in range(8):
        A(f"v_lshlrev_b32 v{U+2*i}, 16, v{R+i}")
        A(f"v_and_b32 v{U+2*i+1}, 0xffff0000, v{R+i}")
    E.wait(ltags=("sr",))
    for i in range(8):
        A(f"v_pk_fma_f32 {vr(U+2*i,2)}, {vr(U+2*i,2)}, {vr(AB+2*i,2)}, {vr(AB+16+2*i,2)}")
    for i in range(8):
        A(f"v_cvt_pk_bf16_f32 v{R+i}, v{U+2*i}, v{U+2*i+1}")
    A(f"s_add_u32 s5, s63, {Z2N_OFF - Z2_OFF}")
    E.v("pub", f"buffer_store_dwordx4 {vr(R,4)}, v{V_L16}, s[16:19], s5 offen sc1")
    E.v("pub", f"buffer_store_dwordx4 {vr(R+4,4)}, v{V_L16}, s[16:19], s5 offen offset:1024 sc1")

def mainbody(A, E, G, tag):
    gops = g_ops() if G else []
    gi = 0
    bseq = []
    for (bt, ks, a, b) in gops:
        if not bseq or bseq[-1] != (bt, ks, b): bseq.append((bt, ks, b))
    bidx = {}
    j = -1
    for n, (bt, ks, a, b) in enumerate(gops):
        if j < 0 or bseq[j] != (bt, ks, b): j += 1
        bidx[n] = j
    bread = 0
    def read_b():
        nonlocal bread
        bt, ks, b = bseq[bread]
        E.l(f"B{bread}", f"ds_read_b128 {vr(GB + (bread % 2) * 4, 4)}, v{V_BAK+ks} offset:{(bt % 3) * 8192 + b * 4096}")
        bread += 1
    last_use = {}
    for n, (bt, ks, a, b) in enumerate(gops): last_use[(bt, ks, a)] = n
    seen_acc = set()
    side = {p: [] for p in range(64)}
    for c in range(2, 11):
        p0 = epoch_start(c - 2)
        if c == 2: p0 = 3 if G else 0
        side[p0] += [lambda c=c: dma_kv(E, c, 0), lambda c=c: dma_kv(E, c, 1)]
    if G:
        for bt in range(8):
            p0 = epoch_start(bt + 1) + 1
            for i in range(4):
                side[p0 + i // 2].append(lambda bt=bt, i=i: dma_w(E, bt, i))
        def flag_set():
            E.wait(vtags=tuple(set(E.vm)))
            A("s_mov_b64 exec, 1")
            E.v("flag", f"buffer_store_dword v{V_T0+2}, v{V_T0+3}, s[16:19], 0 offen sc1")
            A("s_mov_b64 exec, -1")
        side[3].insert(0, flag_set)
        side[9].append(lambda: E.v("poll", f"buffer_load_dword v{V_T0}, v{V_T0+1}, s[16:19], 0 offen sc1"))
        def flag_check():
            E.wait(vtags=("poll",))
            A(f"v_cmp_ne_u32 vcc, 1, v{V_T0}")
            A("s_cbranch_vccz K2_FLAGOK")
            A.label("K2_SPIN")
            A("s_sleep 2")
            A(f"buffer_load_dword v{V_T0}, v{V_T0+1}, s[16:19], 0 offen sc1")
            A("s_waitcnt vmcnt(0)")
            A(f"v_cmp_ne_u32 vcc, 1, v{V_T0}")
            A("s_cbranch_vccnz K2_SPIN")
            A.label("K2_FLAGOK")
        side[12].insert(0, flag_check)
        for ks in range(4):
            for a in range(2):
                side[12 + (ks * 2 + a + 1) // 3].append(lambda ks=ks, a=a: loadA(E, 0, ks, a))
        ep = [f"buffer_load_dwordx4 {vr(ZF,4)}, v{V_L16}, s[16:19], s14 offen",
              f"buffer_load_dwordx4 {vr(ZF+4,4)}, v{V_L16}, s[16:19], s14 offen offset:1024",
              f"buffer_load_ushort v{VBS}, v{V_L2}, s[24:27], s15 offen",
              f"buffer_load_dword v{VG1}, v{V_L4}, s[16:19], s100 offen"]
        for i, t in enumerate(ep): side[7 + i // 2].append(lambda t=t: E.v("epi", t))
        def part_addr():
            for sl in range(1, 4):
                A(f"s_xor_b32 s5, s30, {sl << 1}")
                piece_addr(A, "s5", sl - 1, "s6")
                A(f"v_add_u32 v{V_T0+sl}, s6, v{V_L16}")
        side[56].append(part_addr)
        wr = lambda sl, q4: E.l("pw", f"ds_write_b128 v{V_T0+sl}, {vr(GACC+sl*16+4*q4,4)} offset:{q4*1024}")
        for q4 in range(4):
            side[61].append(lambda q4=q4: wr(1, q4))
            side[62].append(lambda q4=q4: wr(3, q4))
            side[63].append(lambda q4=q4: wr(2, q4))
    side[8].append(lambda: E.v("epi", f"buffer_load_dword v{VG2}, v{V_L4}, s[16:19], s101 offen"))
    TS = int(os.environ.get("K2TS", "7"))
    def touch(q, n):
        share = 30720 if OMAP else 61440
        nl = share // 128 // n // 8
        assert nl * n * 8 * 128 == share and nl <= 64
        A(f"s_mul_i32 s5, s4, {share}")
        A(f"s_mul_i32 s6, s30, {nl * 128}")
        A("s_add_u32 s5, s5, s6")
        if OMAP:
            A("s_and_b32 s6, s3, 1")
            A(f"s_mul_i32 s6, s6, {4*245760}")
            A("s_add_u32 s5, s5, s6")
        A(f"s_add_u32 s5, s5, {WP_OFF + q * (share // n)}")
        A(f"v_lshl_add_u32 v{V_T0}, v{V_LANE}, 7, s5")
        m = (1 << nl) - 1
        A(f"s_mov_b32 exec_lo, {hex(m & 0xffffffff)}")
        A(f"s_mov_b32 exec_hi, {hex(m >> 32)}")
        E.v("touch", f"buffer_load_dword v{V_PF}, v{V_T0}, s[16:19], 0 offen")
        A("s_mov_b64 exec, -1")
    tp = [int(x) for x in os.environ.get("K2TOUCH", "58").split(",") if x]
    for q, p_ in enumerate(tp):
        side[p_].append(lambda q=q: touch(q, len(tp)))
    def code_touch():
        A(f"v_lshlrev_b32 v{V_T0}, 6, v0")
        A(f"v_add_u32 v{V_T0}, K2_EPI-K2_PC, v{V_T0}")
        E.v("touch", f"buffer_load_dword v{V_PF}, v{V_T0}, s[56:59], 0 offen")
    ct = int(os.environ.get("K2CT", "0"))
    if ct: side[ct].append(code_touch)
    pendA = []
    for p in range(64):
        ep_, it = epoch_of(p), p // 2
        if p == epoch_start(ep_) and p > 0:
            E.wait(vtags=(f"kv{ep_}", f"w{ep_-3}"), ltags=tuple(set(E.lg)))
            A("s_barrier")
            if p == 16: stamp(A, 6)
            if p == 58: stamp(A, 1)
        ng = 0
        if G and p >= 16: ng = (3, 3, 2)[(p - 16) % 3]
        sc, so = S[p % 2], S[(p + 1) % 2]
        e = c = 0
        vb_prev, vb_cur = ((p - 1) // 2) % 2, it % 2
        nb = it + 1
        jobs = list(side[p])
        for ch in SEQ[ng]:
            if ch == 'e':
                A(f"v_exp_f32 v{sc+e}, v{sc+e}"); e += 1; continue
            if ch == 'c':
                A(f"v_cvt_pk_bf16_f32 v{sc+c}, v{sc+2*c}, v{sc+2*c+1}"); c += 1; continue
            free = True
            if ch == 'B':
                if p > 0:
                    oo = O[(p + 1) % 2]
                    A(mfma32(oo, VF + vb_prev * 8 + 4, so + 4, oo))
                if PRIO and p % 2 == 0:
                    k = (p - epoch_start(ep_)) // 2
                    A(f"s_setprio {2 - k}")
                if ng and bread <= bidx[gi]:
                    read_b(); free = False
                if p % 2 == 1:
                    E.wait(ltags=("k",))
            elif ch == '1':
                if p < 63:
                    A(qk1(so, (p + 1) % 2))
                if p % 2 == 0 and nb < 32:
                    E.l("k", f"ds_read_b128 {vr(KF,4)}, v{V_KA1} offset:{(nb % 12)*2560}"); free = False
            elif ch == '2':
                if p < 63:
                    A(qk2(so, (p + 1) % 2))
                if p % 2 == 0 and nb < 32:
                    o = (nb % 12) * 2560; vb = nb % 2
                    A("s_mov_b64 exec, s[34:35]")
                    E.l("k", f"ds_read_b64 {vr(KF+4,2)}, v{V_KA2} offset:{o+1024}")
                    A("s_mov_b64 exec, s[32:33]")
                    E.l("v", f"ds_read_b128 {vr(VF+vb*8,4)}, v{V_VA} offset:{o+1280}")
                    E.l("v", f"ds_read_b128 {vr(VF+vb*8+4,4)}, v{V_VA} offset:{o+1920}")
                    A("s_mov_b64 exec, -1")
                    free = False
                elif p % 2 == 1:
                    E.wait(ltags=("v",))
            elif ch == 'g':
                bt, ks, a, b = gops[gi]
                E.wait(vtags=(f"A{bt}_{ks}_{a}",), ltags=(f"B{bidx[gi]}",))
                acc = GACC + (a * 2 + b) * 16
                A(mfma32(acc, GA + ks * 8 + a * 4, GB + (bidx[gi] % 2) * 4, acc if acc in seen_acc else "0"))
                seen_acc.add(acc)
                if last_use[(bt, ks, a)] == gi and bt < 7:
                    pendA.append((bt + 1, ks, a))
                if bread == bidx[gi] + 1 and bread < len(bseq) and bseq[bread][0] == bt:
                    read_b(); free = False
                gi += 1
            elif ch == 'A':
                oo = O[p % 2]
                A(mfma32(oo, VF + vb_cur * 8, sc, oo if p >= 2 else "0"))
            if free:
                if pendA:
                    loadA(E, *pendA.pop(0))
                elif jobs:
                    jobs.pop(0)()
            if ch == 'A':
                while jobs: jobs.pop(0)()
        assert e == 16 and c == 8
    assert gi == len(gops) and not pendA

def piece_addr(A, wd, j, dst):
    if j < 2:
        slot = (5 % 3, 6 % 3)[j]
        A(f"s_lshr_b32 s7, {wd}, 1")
        A("s_mul_i32 s7, s7, 24576")
        A(f"s_and_b32 {dst}, {wd}, 1")
        A(f"s_lshl_b32 {dst}, {dst}, 12")
        A(f"s_add_u32 {dst}, {dst}, s7")
        A(f"s_add_u32 {dst}, {dst}, {WB + slot * 8192}")
    else:
        A(f"s_and_b32 s7, {wd}, 3")
        A(f"s_lshl_b32 {dst}, s7, 12")
        A("s_cmp_eq_u32 s7, 3")
        A(f"s_cselect_b32 {dst}, 23040, {dst}")
        A(f"s_lshr_b32 s7, {wd}, 2")
        A(f"s_mul_i32 s7, s7, {KVH}")
        A(f"s_add_u32 {dst}, {dst}, s7")

def opiece_addr(A, wd, dst):
    A(f"s_lshr_b32 s7, {wd}, 1")
    A("s_mul_i32 s7, s7, 24576")
    A(f"s_and_b32 {dst}, {wd}, 1")
    A(f"s_lshl_b32 {dst}, {dst}, 12")
    A(f"s_add_u32 {dst}, {dst}, s7")
    A(f"s_add_u32 {dst}, {dst}, {WB + (7 % 3) * 8192}")

def max16(A, dst, sb, init=None):
    if init is None:
        A(f"v_max3_f32 v{dst}, v{sb}, v{sb+1}, v{sb+2}")
        rest = list(range(3, 16))
    else:
        rest = list(range(0, 16))
    while len(rest) >= 2:
        A(f"v_max3_f32 v{dst}, v{dst}, v{sb+rest[0]}, v{sb+rest[1]}")
        rest = rest[2:]
    if rest:
        A(f"v_max_f32 v{dst}, v{dst}, v{sb+rest[0]}")

def set_bias(A, m, slot, t):
    q2 = QF + slot * 6 + 4
    A(f"v_mov_b32 v{t}, v{m}")
    A("s_nop 1")
    A(f"v_permlane32_swap_b32 v{t}, v{m}")
    A("s_nop 1")
    A(f"v_max_f32 v{m}, v{m}, v{t}")
    A(f"v_sub_f32 v{m}, 0, v{m}")
    A(f"v_and_b32 v{t}, 0xffff0000, v{m}")
    A(f"v_sub_f32 v{t+1}, v{m}, v{t}")
    A(f"v_and_b32 v{t+2}, 0xffff0000, v{t+1}")
    A(f"v_sub_f32 v{t+3}, v{t+1}, v{t+2}")
    A(f"v_lshrrev_b32 v{t}, 16, v{t}")
    A(f"v_or_b32 v{t}, v{t}, v{t+2}")
    A(f"v_lshrrev_b32 v{t+3}, 16, v{t+3}")
    A(f"v_cndmask_b32 v{q2}, v{q2}, v{t}, s[44:45]")
    A(f"v_cndmask_b32 v{q2+1}, v{q2+1}, v{t+3}, s[44:45]")

def kv_global(A, soff):
    A(f"buffer_load_dwordx4 {vr(KF,4)}, v{V_L16}, s[16:19], {soff} offen")
    A("s_mov_b64 exec, s[34:35]")
    A(f"buffer_load_dwordx2 {vr(KF+4,2)}, v{V_KA2}, s[16:19], {soff} offen offset:1024")
    A("s_mov_b64 exec, s[32:33]")
    A(f"buffer_load_dwordx4 {vr(VF,4)}, v{V_VA}, s[16:19], {soff} offen offset:1280")
    A(f"buffer_load_dwordx4 {vr(VF+4,4)}, v{V_VA}, s[16:19], {soff} offen offset:1920")
    A("s_mov_b64 exec, -1")

XSC = '' if os.environ.get('K2XSC') == '0' else ' sc1'
NOLDS = os.environ.get('K2NOLDS')
FUSE = int(os.environ.get('FUSE', '1'))
STSC = ' sc1' if FUSE and os.environ.get('K2STSC') != '0' else ''

FX = 16
FW = 112
FACC = 232
F_TRB = 4
F_AO = 7
F_OUT = 9
F_T = 252

def wp_dma(A, src, dst, nbytes):
    A(f"s_mul_i32 s5, s30, {nbytes}")
    n = (nbytes + 1023) // 1024
    for i0 in range(0, n, 4):
        A(f"s_add_u32 m0, s5, {dst + i0*1024}")
        A(f"s_add_u32 s6, s5, {src + i0*1024}")
        for i in range(i0, min(i0 + 4, n)):
            half = (i + 1) * 1024 > nbytes
            if half: A("s_mov_b64 exec, s[34:35]")
            A(f"buffer_load_dwordx4 v{V_L16}, s[40:43], s6 offen offset:{(i-i0)*1024} lds")
            if half: A("s_mov_b64 exec, -1")
    return n

def outproj_dma1(A):
    A("s_mul_i32 s5, s67, 245760")
    A(f"s_add_u32 s5, s5, {WP_OFF}")
    A("s_add_u32 s40, s12, s5")
    A("s_addc_u32 s41, s13, 0")
    A("s_mov_b32 s42, 245760")
    A("s_mov_b32 s43, 0x00020000")
    wp_dma(A, 0, 0, 8192)

def f_tr(i, nt):
    st, jj = divmod(i, 2)
    slot = st % 8
    base = F_TRB + slot // 3
    d = FW + (i % 6) * 20 + nt * 4
    o = (slot % 3) * 20480 + jj * 10240 + nt * 32
    return [f"ds_read_b64_tr_b16 {vr(d,2)}, v{base} offset:{o}", f"ds_read_b64_tr_b16 {vr(d+2,2)}, v{base} offset:{o + 1280}"]

def outproj(A):
    A("s_mov_b64 exec, -1")
    A("s_load_dwordx2 s[8:9], s[0:1], 88")
    A("s_lshl_b32 s5, s36, 8")
    A(f"s_add_u32 s5, s5, {FLAG_OFF + 8192}")
    A(f"v_lshl_add_u32 v{V_T0+1}, v{V_LANE}, 2, s5")
    A("s_lshl_b32 s5, s28, 8")
    A(f"s_add_u32 s5, s5, {FLAG_OFF + 8192}")
    A("s_lshl_b32 s6, s29, 3")
    A("s_add_u32 s6, s6, s30")
    A("s_lshl_b32 s6, s6, 2")
    A("s_add_u32 s5, s5, s6")
    A("s_lshl_b32 s62, s36, 1")
    A("s_add_u32 s62, s62, s48")
    A(f"v_mov_b32 v{V_T0+3}, s5")
    A(f"v_mov_b32 v{V_T0+2}, 1")
    t = F_T
    A(f"v_bfe_u32 v{t}, v{V_LANE}, 2, 2")
    A(f"v_bfe_u32 v{t+1}, v{V_LANE}, 4, 1")
    A(f"v_lshl_add_u32 v{t}, v{t+1}, 2, v{t}")
    A(f"v_lshl_add_u32 v{t}, v{V_H}, 4, v{t}")
    A(f"v_mul_u32_u24 v{F_TRB}, 160, v{t}")
    A(f"v_and_b32 v{t}, 3, v{V_LANE}")
    A(f"v_lshl_add_u32 v{F_TRB}, v{t}, 3, v{F_TRB}")
    A("s_mul_i32 s5, s46, 5120")
    A(f"v_add_u32 v{F_TRB}, s5, v{F_TRB}")
    A(f"v_add_u32 v{F_TRB+1}, 61440, v{F_TRB}")
    A(f"v_add_u32 v{F_TRB+2}, 122880, v{F_TRB}")
    A(f"s_mul_i32 s5, s62, {94*1024}")
    A("s_lshl_b32 s6, s46, 11")
    A("s_add_u32 s5, s5, s6")
    A(f"s_add_u32 s5, s5, {ACT_OFF}")
    A(f"v_and_b32 v{t+2}, 15, v{V_LANE}")
    A("s_lshl_b32 s6, s47, 4")
    A(f"v_add_u32 v{t+2}, s6, v{t+2}")
    A(f"v_lshrrev_b32 v{t+3}, 4, v{V_LANE}")
    A(f"v_lshl_add_u32 v{t}, v{t+3}, 9, s5")
    A(f"v_lshl_add_u32 v{F_AO}, v{t+2}, 4, v{t}")
    A(f"v_lshl_add_u32 v{F_AO+1}, v{t+2}, 3, v{t}")
    A("s_lshl_b32 s5, s62, 5")
    A(f"v_add_u32 v{t}, s5, v{t+2}")
    A("s_movk_i32 s6, 1280")
    A(f"v_mul_lo_u32 v{t}, v{t}, s6")
    A(f"v_lshl_add_u32 v{t}, v{t+3}, 3, v{t}")
    A("s_mul_i32 s5, s67, 160")
    A(f"v_add_u32 v{F_OUT}, s5, v{t}")
    A("s_and_b32 s5, s30, 3")
    A("s_mul_i32 s5, s5, 5120")
    A("s_add_u32 s5, s5, 81920")
    A(f"v_add_u32 v{t}, s5, v{V_L16}")
    A("s_waitcnt vmcnt(0) lgkmcnt(0)")
    stamp(A, 2)
    A("s_mov_b64 exec, 1")
    A(f"buffer_store_dword v{V_T0+2}, v{V_T0+3}, s[16:19], 0 offen sc1")
    A("s_mov_b64 exec, -1")
    srd(A, 20, 8, 2048 * 1280)
    A("s_barrier")
    E = Em(A, ["flag"])
    E.vm += ["d2"] * wp_dma(A, 65536, 65536, 12288)
    for i in range(6):
        for nt in range(5):
            for r in f_tr(i, nt): A(r)
    A("s_waitcnt lgkmcnt(0)")
    A("s_barrier")
    E.vm += ["d3"] * wp_dma(A, 163840, 0, 7680)
    A("s_cmp_lg_u32 s30, 0")
    A("s_cbranch_scc1 K2_NOSPIN2")
    A.label("K2_SPIN2")
    A(f"buffer_load_dword v{V_T0}, v{V_T0+1}, s[16:19], 0 offen sc1")
    A("s_waitcnt vmcnt(0)")
    A(f"v_cmp_ne_u32 vcc, 1, v{V_T0}")
    A("s_cbranch_vccz K2_NOSPIN2")
    A("s_sleep 4")
    A("s_branch K2_SPIN2")
    A.label("K2_NOSPIN2")
    E.wait(vtags=("d2",))
    A("s_barrier")
    stamp(A, 3)
    if int(os.environ.get("K2AT", "0")):
        A("s_lshl_b32 s5, s29, 3")
        A("s_add_u32 s5, s5, s30")
        A("s_mul_i32 s5, s5, 3072")
        A(f"s_mul_i32 s6, s28, {2*94*1024}")
        A("s_add_u32 s5, s5, s6")
        A(f"s_add_u32 s5, s5, {ACT_OFF}")
        A(f"v_lshl_add_u32 v{t+1}, v{V_LANE}, 6, s5")
        A("s_mov_b32 exec_hi, 0xffff")
        E.v("at", f"buffer_load_dword v{t+2}, v{t+1}, s[16:19], 0 offen{XSC}")
        A("s_mov_b64 exec, -1")
    def xload(i):
        A(f"s_mov_b32 s7, {i * 4096}")
        if i in (8, 9):
            for q in range(2):
                E.v(f"x{i}", f"buffer_load_dwordx2 {vr(FX + i*4 + 2*q, 2)}, v{F_AO+1}, s[16:19], s7 offen offset:{q*256}{XSC}")
        else:
            E.v(f"x{i}", f"buffer_load_dwordx4 {vr(FX + i*4, 4)}, v{F_AO}, s[16:19], s7 offen{XSC}")
    XW = int(os.environ.get("K2XW", "8"))
    for i in range(XW): xload(i)
    PD = 6
    if os.environ.get("K2FP"): stamp(A, 1)
    for i in range(24):
        if os.environ.get("K2FP") and i in (1, 8, 16): stamp(A, {1: 2, 8: 4, 16: 5}[i])
        if i == 23:
            A("s_cmp_eq_u32 s46, 1")
            A("s_cbranch_scc1 K2_FEND")
        if i == 4:
            E.wait(ltags=("w7_4",))
            A("s_barrier")
            E.vm += ["d4"] * wp_dma(A, 225280, 61440, 2048)
        if i == 22 - PD:
            E.wait(vtags=("d4",))
            A("s_barrier")
        seg0, segn = (0, 4) if i < 4 else ((4, 12) if i < 16 else (16, 8))
        pr = 3 - (i - seg0) * 4 // segn
        if FPRIO and (i == seg0 or pr != 3 - (i - 1 - seg0) * 4 // segn): A(f"s_setprio {pr}")
        for nt in range(5):
            E.wait(vtags=(f"x{i}",), ltags=(f"w{i}_{nt}",))
            acc = FACC + nt * 4
            c = "0" if i == 0 else vr(acc, 4)
            A(f"v_mfma_f32_16x16x32_bf16 {vr(acc,4)}, {vr(FW + (i%6)*20 + nt*4, 4)}, {vr(FX + i*4, 4)}, {c}")
            if nt == 0 and i + XW < 24: xload(i + XW)
            if i + PD < 24:
                for r in f_tr(i + PD, nt): E.l(f"w{i+PD}_{nt}", r)
    stamp(A, 6)
    A("s_barrier")
    RD = FX
    for nt in range(5):
        A(f"ds_read_b128 {vr(RD + 4*nt, 4)}, v{t} offset:{nt*1024}")
    A("s_nop 1")
    for nt in range(5):
        a = FACC + nt * 4; r = RD + 4 * nt
        A(f"s_waitcnt lgkmcnt({4-nt})")
        A(f"v_pk_add_f32 {vr(a,2)}, {vr(a,2)}, {vr(r,2)}")
        A(f"v_pk_add_f32 {vr(a+2,2)}, {vr(a+2,2)}, {vr(r+2,2)}")
        A(f"v_cvt_pk_bf16_f32 v{a}, v{a}, v{a+1}")
        A(f"v_cvt_pk_bf16_f32 v{a+1}, v{a+2}, v{a+3}")
        A(f"buffer_store_dwordx2 {vr(a,2)}, v{F_OUT}, s[20:23], 0 offen offset:{nt*32}")
    A("s_branch K2_FDONE")
    A.label("K2_FEND")
    stamp(A, 6)
    A("s_nop 5")
    for nt in range(5):
        A(f"ds_write_b128 v{t}, {vr(FACC + 4*nt, 4)} offset:{nt*1024}")
    A("s_waitcnt lgkmcnt(0)")
    A("s_barrier")
    A.label("K2_FDONE")

def gen_k2(A, name, text_end_label):
    kernel_begin(A, name)
    A("s_cmp_ge_u32 s2, 256")
    A("s_cbranch_scc1 K2_EXIT")
    stamp_init(A, 1)
    A("s_load_dwordx4 s[8:11], s[0:1], 56")
    A("s_load_dwordx2 s[12:13], s[0:1], 104")
    code_prefetch(A, "K2", text_end_label, V_T0, V_PF)
    A("s_and_b32 s3, s2, 7")
    A("s_lshr_b32 s4, s2, 3")
    A("s_lshl_b32 s28, s3, 2")
    A("s_lshr_b32 s5, s4, 3")
    A("s_add_u32 s28, s28, s5")
    A("s_and_b32 s29, s4, 7")
    if OMAP:
        A("s_lshr_b32 s36, s3, 1")
        A("s_lshl_b32 s36, s36, 3")
        A("s_lshr_b32 s5, s4, 2")
        A("s_add_u32 s36, s36, s5")
        A("s_and_b32 s67, s3, 1")
        A("s_lshl_b32 s67, s67, 2")
        A("s_and_b32 s5, s4, 3")
        A("s_add_u32 s67, s67, s5")
    else:
        A("s_mov_b32 s36, s28")
        A("s_mov_b32 s67, s29")
    A(f"v_lshrrev_b32 v{V_T0+1}, 6, v0")
    A(f"v_and_b32 v{V_LANE}, 63, v0")
    A(f"v_readfirstlane_b32 s30, v{V_T0+1}")
    A(f"v_and_b32 v{V_LM}, 31, v0")
    A(f"v_bfe_u32 v{V_H}, v0, 5, 1")
    A(f"v_lshlrev_b32 v{V_L16}, 4, v{V_LANE}")
    A("s_mov_b32 s32, 0xfffff")
    A("s_mov_b32 s33, 0xfffff")
    A("s_mov_b32 s34, -1")
    A("s_mov_b32 s35, 0")
    A("s_mov_b32 s44, 0")
    A("s_mov_b32 s45, -1")
    A("s_lshr_b32 s46, s30, 2")
    A("s_and_b32 s47, s30, 1")
    A("s_bfe_u32 s48, s30, 0x10001")
    A("s_lshr_b32 s49, s30, 1")
    A("s_lshl_b32 s50, s28, 1")
    A("s_add_u32 s50, s50, s47")
    A("s_lshl_b32 s51, s29, 2")
    A("s_lshl_b32 s5, s48, 1")
    A("s_add_u32 s51, s51, s5")
    A("s_add_u32 s51, s51, s46")
    A(f"v_lshlrev_b32 v{V_KA2}, 3, v{V_LM}")
    A(f"v_mul_u32_u24 v{V_VA}, 20, v{V_H}")
    A(f"v_add_u32 v{V_VA}, v{V_VA}, v{V_LM}")
    A(f"v_lshlrev_b32 v{V_VA}, 4, v{V_VA}")
    A(f"v_and_b32 v{V_T0}, 27, v{V_LM}")
    A(f"v_cmp_eq_u32 vcc, 24, v{V_T0}")
    A(f"v_mov_b32 v{V_T0+1}, 0x3f803f80")
    A("s_nop 0")
    for i in range(16):
        A(f"v_cndmask_b32 v{VF+i}, 0, v{V_T0+1}, vcc")
    A(f"v_mov_b32 v{KF+4}, 0x3f803f80")
    A(f"v_mov_b32 v{KF+5}, 0x3f80")
    A("s_lshl_b32 s5, s50, 5")
    A("s_add_u32 s5, s5, s51")
    A("s_mul_i32 s52, s5, 1280")
    A("s_xor_b32 s5, s5, 1")
    A("s_mul_i32 s53, s5, 1280")
    A(f"s_mov_b32 s54, {KV_OFF}")
    A("s_mul_i32 s55, s46, 81920")
    A(f"s_add_u32 s55, s55, {KV_OFF}")
    A("s_lshl_b32 s5, s29, 2")
    A("s_add_u32 s5, s5, s49")
    A("s_min_u32 s5, s5, 26")
    A("s_lshl_b32 s63, s5, 17")
    A("s_lshl_b32 s5, s50, 11")
    A("s_add_u32 s63, s63, s5")
    A(f"s_add_u32 s63, s63, {Z2_OFF}")
    A("s_lshr_b32 s5, s50, 2")
    A("s_mul_i32 s5, s5, 24")
    A("s_and_b32 s6, s50, 3")
    A("s_add_u32 s5, s5, s6")
    A("s_lshl_b32 s5, s5, 8")
    A(f"s_add_u32 s38, s5, {STAT_OFF}")
    A(f"v_mul_u32_u24 v{V_T0}, 3072, v{V_H}")
    A(f"v_add_u32 v{V_T0}, v{V_T0}, v{V_KA2}")
    A("s_and_b32 s5, s30, 3")
    A("s_lshl_b32 s6, s5, 11")
    A(f"s_mul_i32 s64, s46, {KVH}")
    A("s_add_u32 s64, s64, s6")
    A("s_add_u32 s66, s55, s6")
    A("s_cmp_eq_u32 s5, 3")
    A("s_mov_b32 s68, -1")
    A("s_cselect_b32 s69, 0, -1")
    A("s_waitcnt lgkmcnt(0)")
    srd(A, 16, 12, WS_BYTES)
    E = Em(A, ["pf"])
    for slot in range(2):
        q = QF + slot * 6
        E.v("q", f"buffer_load_dwordx4 {vr(q,4)}, v{V_L16}, s[16:19], s{52+slot} offen")
        E.v("q", f"buffer_load_dwordx2 {vr(q+4,2)}, v{V_KA2}, s[16:19], s{52+slot} offen offset:1024")
    for i in range(2): dma_kv(E, 0, i)
    A(f"v_mov_b32 v{V_G0+6}, v{V_T0}")
    A(f"v_mov_b32 v{V_G0+7}, v{V_KA2}")
    srd(A, 20, 8, 2048 * 4096)
    srd(A, 24, 10, 4096)
    A("s_mul_i32 s65, s49, 24576")
    A("s_lshl_b32 s5, s47, 12")
    A("s_add_u32 s65, s65, s5")
    A(f"s_add_u32 s65, s65, {WB}")
    A("s_xor_b32 s5, s47, s48")
    A("s_lshl_b32 s7, s28, 1")
    A("s_add_u32 s5, s5, s7")
    A("s_lshl_b32 s5, s5, 17")
    A("s_lshl_b32 s7, s49, 10")
    A("s_add_u32 s5, s5, s7")
    A(f"v_lshrrev_b32 v{V_T0}, 3, v{V_LANE}")
    A(f"v_lshlrev_b32 v{V_T0}, 12, v{V_T0}")
    A(f"v_lshrrev_b32 v{V_T0+3}, 4, v{V_LANE}")
    A(f"v_and_b32 v{V_WD}, 7, v{V_LANE}")
    A(f"v_xor_b32 v{V_WD}, v{V_WD}, v{V_T0+3}")
    A(f"v_lshl_add_u32 v{V_WD}, v{V_WD}, 4, v{V_T0}")
    A(f"v_add_u32 v{V_WD}, s5, v{V_WD}")
    A(f"v_xor_b32 v{V_WD+1}, 64, v{V_WD}")
    A("s_lshl_b32 s5, s29, 2")
    A("s_lshl_b32 s6, s47, 1")
    A("s_add_u32 s5, s5, s6")
    A("s_lshr_b32 s6, s49, 1")
    A("s_add_u32 s60, s5, s6")
    A("s_xor_b32 s61, s60, 1")
    A("s_lshl_b32 s7, s49, 15")
    A(f"s_add_u32 s7, s7, {Z2N_OFF}")
    for a in range(2):
        A(f"s_min_u32 s5, s{60+a}, 26")
        A("s_lshl_b32 s5, s5, 17")
        A("s_add_u32 s5, s5, s7")
        A(f"v_add_u32 v{V_GA+a}, s5, v{V_L16}")
    A("s_lshl_b32 s62, s28, 1")
    A("s_add_u32 s62, s62, s48")
    A("s_mul_i32 s14, s62, 54")
    A("s_min_u32 s5, s60, 26")
    A("s_lshl_b32 s5, s5, 1")
    A("s_add_u32 s14, s14, s5")
    A("s_lshl_b32 s14, s14, 10")
    A(f"s_add_u32 s14, s14, {Z1_OFF}")
    A("s_lshl_b32 s15, s62, 6")
    A("s_lshl_b32 s100, s62, 7")
    A(f"s_add_u32 s100, s100, {GATE_OFF}")
    A("s_lshl_b32 s101, s50, 7")
    A(f"s_add_u32 s101, s101, {GATE_OFF}")
    A(f"v_lshlrev_b32 v{V_L2}, 1, v{V_LM}")
    A(f"v_lshlrev_b32 v{V_L4}, 2, v{V_LM}")
    A(f"s_mul_i32 s5, s46, {KVH}")
    A(f"v_add_u32 v{V_KA1}, s5, v{V_L16}")
    A(f"v_add_u32 v{V_KA2}, s5, v{V_KA2}")
    A(f"v_add_u32 v{V_VA}, s5, v{V_VA}")
    A("s_mul_i32 s5, s49, 24576")
    A(f"s_add_u32 s5, s5, {WB}")
    A(f"v_bfe_u32 v{V_T0}, v{V_LM}, 1, 3")
    A(f"v_xor_b32 v{V_T0}, v{V_T0}, v{V_H}")
    A(f"v_lshlrev_b32 v{V_T0}, 4, v{V_T0}")
    A(f"v_lshl_add_u32 v{V_T0}, v{V_LM}, 7, v{V_T0}")
    for ks in range(4):
        A(f"v_xor_b32 v{V_BAK+ks}, {ks*32}, v{V_T0}")
        A(f"v_add_u32 v{V_BAK+ks}, s5, v{V_BAK+ks}")
    A("s_lshl_b32 s5, s29, 5")
    A("s_add_u32 s6, s5, s28")
    A("s_lshl_b32 s6, s6, 3")
    A("s_add_u32 s6, s6, s30")
    A("s_lshl_b32 s6, s6, 2")
    A(f"s_add_u32 s6, s6, {FLAG_OFF}")
    A(f"v_mov_b32 v{V_T0+3}, s6")
    A(f"v_mov_b32 v{V_T0+2}, 1")
    A("s_lshl_b32 s6, s49, 3")
    A("s_add_u32 s5, s5, s6")
    A("s_lshl_b32 s5, s5, 5")
    A("s_lshl_b32 s6, s47, 4")
    A("s_add_u32 s5, s5, s6")
    A(f"s_add_u32 s5, s5, {FLAG_OFF}")
    A(f"v_lshrrev_b32 v{V_T0}, 2, v{V_LM}")
    A(f"v_lshlrev_b32 v{V_T0}, 5, v{V_T0}")
    A(f"v_and_b32 v{V_T0+1}, 3, v{V_LM}")
    A(f"v_lshl_add_u32 v{V_T0+1}, v{V_T0+1}, 2, v{V_T0}")
    A(f"v_add_u32 v{V_T0+1}, s5, v{V_T0+1}")
    for i in range(3):
        E.v("nrm", f"buffer_load_dwordx2 {vr(GACC+8+2*i,2)}, v{V_G0+6}, s[16:19], s38 offen offset:{i*1024}")
    E.v("nrm", f"buffer_load_dwordx4 {vr(GACC,4)}, v{V_L16}, s[16:19], s63 offen")
    E.v("nrm", f"buffer_load_dwordx4 {vr(GACC+4,4)}, v{V_L16}, s[16:19], s63 offen offset:1024")
    for i in range(2): dma_kv(E, 1, i)
    E.wait(vtags=("kv0",))
    A("s_barrier")
    A(f"ds_read_b128 {vr(V_G0,4)}, v{V_L16}")
    A(f"ds_read_b64 {vr(V_G0+4,2)}, v{V_G0+7} offset:1024")
    A(f"ds_read_b128 {vr(KF,4)}, v{V_KA1}")
    A("s_mov_b64 exec, s[34:35]")
    A(f"ds_read_b64 {vr(KF+4,2)}, v{V_KA2} offset:1024")
    A("s_mov_b64 exec, s[32:33]")
    A(f"ds_read_b128 {vr(VF,4)}, v{V_VA} offset:1280")
    A(f"ds_read_b128 {vr(VF+4,4)}, v{V_VA} offset:1920")
    A("s_mov_b64 exec, -1")
    A(f"v_mov_b32 v{TT}, 0")
    for slot in range(2):
        q2 = QF + slot * 6 + 4
        A(f"v_cndmask_b32 v{q2}, v{q2}, v{TT}, s[44:45]")
        A(f"v_cndmask_b32 v{q2+1}, v{q2+1}, v{TT}, s[44:45]")
    A("s_waitcnt lgkmcnt(4)")
    A("s_nop 0")
    A(qk1(S[0], 0, V_G0)); A(qk2(S[0], 0, V_G0)); A(qk1(S[1], 1, V_G0)); A(qk2(S[1], 1, V_G0))
    A("s_nop 9")
    max16(A, TT, S[0])
    max16(A, TT + 1, S[1])
    set_bias(A, TT, 0, TT + 2)
    set_bias(A, TT + 1, 1, TT + 6)
    A("s_waitcnt lgkmcnt(0)")
    A(qk1(S[0], 0)); A(qk2(S[0], 0))
    A("s_cmp_eq_u32 s29, 7")
    A("s_cbranch_scc1 K2_NOG")
    EG = Em(A, E.vm)
    normalise(A, EG)
    stamp(A, 3)
    mainbody(A, EG, True, "G")
    EG.wait(vtags=("epi",), ltags=tuple(set(EG.lg)))
    A("s_branch K2_EPI")
    A.label("K2_NOG")
    A("s_nop 9")
    stamp(A, 3)
    EN = Em(A, E.vm)
    mainbody(A, EN, False, "N")
    EN.wait(vtags=("epi",), ltags=tuple(set(EN.lg)))
    A.label("K2_EPI")
    stamp(A, 4)
    A("s_nop 1")
    A(mfma32(O[1], VF + 8 + 4, S[1] + 4, O[1]))
    A("s_xor_b32 s5, s30, 4")
    opiece_addr(A, "s5", "s6")
    A(f"v_add_u32 v{V_T0}, s6, v{V_L16}")
    opiece_addr(A, "s30", "s6")
    A(f"v_add_u32 v{TT+8}, s6, v{V_L16}")
    A("s_barrier")
    for q4 in range(4):
        A(f"ds_write_b128 v{V_T0}, {vr(O[1]+4*q4,4)} offset:{q4*1024}")
    A("s_cmp_ge_u32 s60, 27")
    A("s_cbranch_scc1 K2_OFIN")
    for j in range(3):
        piece_addr(A, "s30", j, "s6")
        A(f"v_add_u32 v{V_T0+1+j}, s6, v{V_L16}")
        for q4 in range(4):
            A(f"ds_read_b128 {vr(GACC+16+16*j+4*q4,4)}, v{V_T0+1+j} offset:{q4*1024}")
    C, BC = TT, TT + 2
    A(f"v_sub_f32 v{C}, 1.0, v{VG1}")
    A(f"v_lshlrev_b32 v{VBS}, 16, v{VBS}")
    A(f"v_mov_b32 v{C+1}, v{C}")
    A(f"v_mul_f32 v{BC}, v{VBS}, v{C}")
    A(f"v_mov_b32 v{BC+1}, v{BC}")
    ZU = GA
    for i in range(8):
        A(f"v_lshlrev_b32 v{ZU+2*i}, 16, v{ZF+i}")
        A(f"v_and_b32 v{ZU+2*i+1}, 0xffff0000, v{ZF+i}")
    A("s_mul_i32 s5, s62, 94")
    A("s_lshl_b32 s6, s60, 1")
    A("s_add_u32 s5, s5, s6")
    A("s_lshl_b32 s5, s5, 10")
    A(f"s_add_u32 s5, s5, {ACT_OFF + 40*1024}")
    for sl in range(1, 4):
        A(f"s_waitcnt lgkmcnt({(3-sl)*4})")
        for i in range(8):
            A(f"v_pk_add_f32 {vr(GACC+2*i,2)}, {vr(GACC+2*i,2)}, {vr(GACC+sl*16+2*i,2)}")
    for i in range(8):
        A(f"v_pk_fma_f32 {vr(GACC+2*i,2)}, {vr(GACC+2*i,2)}, {vr(C,2)}, {vr(BC,2)}")
    for i in range(8):
        A(f"v_pk_mul_f32 {vr(GACC+2*i,2)}, {vr(GACC+2*i,2)}, {vr(ZU+2*i,2)}")
    for i in range(8):
        A(f"v_cvt_pk_bf16_f32 v{GACC+16+i}, v{GACC+2*i}, v{GACC+2*i+1}")
    A(f"buffer_store_dwordx4 {vr(GACC+16,4)}, v{V_L16}, s[16:19], s5 offen{STSC}")
    A(f"buffer_store_dwordx4 {vr(GACC+20,4)}, v{V_L16}, s[16:19], s5 offen offset:1024{STSC}")
    A.label("K2_OFIN")
    A("s_waitcnt lgkmcnt(0)")
    A("s_barrier")
    stamp(A, 5)
    for q4 in range(4):
        A(f"ds_read_b128 {vr(O[1]+4*q4,4)}, v{TT+8} offset:{q4*1024}")
    if FUSE: outproj_dma1(A)
    A("s_waitcnt lgkmcnt(0)")
    for i in range(7):
        A(f"v_pk_add_f32 {vr(O[0]+2*i,2)}, {vr(O[0]+2*i,2)}, {vr(O[1]+2*i,2)}")
    A(f"v_mov_b32 v{TT}, v{O[0]+12}")
    for i in range(12):
        A(f"v_fma_f32 v{TT}, v{O[0]+i}, 0, v{TT}")
    A(f"s_mov_b32 s5, {f32(2.0**60)}")
    A(f"v_cmp_ngt_f32 vcc, s5, v{TT}")
    A("s_cbranch_vccnz K2_FALLBACK")
    A.label("K2_OSTORE")
    A(f"v_rcp_f32 v{TT}, v{O[0]+12}")
    A("s_mul_i32 s5, s50, 94")
    A("s_lshl_b32 s5, s5, 10")
    A(f"s_add_u32 s5, s5, {ACT_OFF}")
    A(f"v_mul_f32 v{TT}, v{TT}, v{VG2}")
    A(f"v_mov_b32 v{TT+1}, v{TT}")
    A("s_lshl_b32 s6, s51, 10")
    A("s_add_u32 s6, s6, s5")
    A("s_lshl_b32 s7, s51, 8")
    A("s_add_u32 s7, s7, s5")
    A("s_add_u32 s7, s7, 32768")
    A(f"v_lshlrev_b32 v{TT+4}, 3, v{V_LM}")
    for i in range(6):
        A(f"v_pk_mul_f32 {vr(O[0]+2*i,2)}, {vr(O[0]+2*i,2)}, {vr(TT,2)}")
    for i in range(6):
        A(f"v_cvt_pk_bf16_f32 v{O[1]+i}, v{O[0]+2*i}, v{O[0]+2*i+1}")
    A(f"buffer_store_dwordx4 {vr(O[1],4)}, v{V_L16}, s[16:19], s6 offen{STSC}")
    A("s_mov_b64 exec, s[34:35]")
    A(f"buffer_store_dwordx2 {vr(O[1]+4,2)}, v{TT+4}, s[16:19], s7 offen{STSC}")
    if FUSE: outproj(A)
    endpgm(A)
    A.label("K2_EXIT")
    A("s_endpgm")
    A.label("K2_FALLBACK")
    q2 = QF + 4
    A(f"v_mov_b32 v{TT}, 0")
    A(f"v_cndmask_b32 v{q2}, v{q2}, v{TT}, s[44:45]")
    A(f"v_cndmask_b32 v{q2+1}, v{q2+1}, v{TT}, s[44:45]")
    A(f"v_lshlrev_b32 v{V_KA2}, 3, v{V_LM}")
    A(f"v_mul_u32_u24 v{V_VA}, 20, v{V_H}")
    A(f"v_add_u32 v{V_VA}, v{V_VA}, v{V_LM}")
    A(f"v_lshlrev_b32 v{V_VA}, 4, v{V_VA}")
    A(f"v_mov_b32 v{TT}, 0xff800000")
    A(f"s_mov_b32 s54, {KV_OFF}")
    A.label("K2_FB1")
    kv_global(A, "s54")
    A("s_waitcnt vmcnt(0)")
    A(qk1(S[0], 0)); A(qk2(S[0], 0))
    A("s_nop 15")
    max16(A, TT, S[0], init=True)
    A("s_add_u32 s54, s54, 2560")
    A(f"s_cmp_lt_u32 s54, {KV_OFF + 163840}")
    A("s_cbranch_scc1 K2_FB1")
    set_bias(A, TT, 0, TT + 2)
    for i in range(16):
        A(f"v_mov_b32 v{O[0]+i}, 0")
    A(f"s_mov_b32 s54, {KV_OFF}")
    A.label("K2_FB2")
    kv_global(A, "s54")
    A("s_waitcnt vmcnt(0)")
    A(qk1(S[0], 0)); A(qk2(S[0], 0))
    A("s_nop 15")
    for i in range(16):
        A(f"v_exp_f32 v{S[0]+i}, v{S[0]+i}")
    A("s_nop 0")
    for i in range(8):
        A(f"v_cvt_pk_bf16_f32 v{S[0]+i}, v{S[0]+2*i}, v{S[0]+2*i+1}")
    A("s_nop 1")
    A(mfma32(O[0], VF, S[0], O[0]))
    A(mfma32(O[0], VF + 4, S[0] + 4, O[0]))
    A("s_add_u32 s54, s54, 2560")
    A(f"s_cmp_lt_u32 s54, {KV_OFF + 163840}")
    A("s_cbranch_scc1 K2_FB2")
    A("s_nop 15")
    A("s_branch K2_OSTORE")
```

```python
from asmlib import *

R = 4
NST = 12
SLOT = 20480
AB = R * SLOT
K3_LDS = AB + R * 16384
V_LANE = 1
ACC = 16
WF = 56
XF = 96
V_TRB = 112
V_ARD = 114
V_L16 = 116
V_PF = 117
RD = 120
K3_VGPR = 144

def issue_group(st):
    out = []
    slot = st % R
    out.append(f"s_add_u32 s41, s40, {st*8192}\ns_add_u32 m0, s53, {slot*16384}\ns_nop 0")
    for i in range(4):
        out.append(f"buffer_load_dwordx4 v{V_L16}, s[32:35], s41 offen offset:{i*1024} lds")
    out.append(f"s_add_u32 s42, s52, {st*SLOT}\ns_add_u32 m0, s52, {slot*SLOT}\ns_nop 0")
    for i in range(4):
        out.append(f"buffer_load_dwordx4 v{V_L16}, s[28:31], s42 offen offset:{i*1024} lds")
    out.append(f"s_add_u32 s42, s42, 4096\ns_add_u32 m0, s52, {slot*SLOT + 4096}\ns_nop 0")
    out.append(f"buffer_load_dwordx4 v{V_L16}, s[28:31], s42 offen lds")
    return out

def tr_reads(j, nt):
    st, jj = divmod(j, 2)
    slot = st % R
    base = V_TRB + slot // 2
    d = WF + (j % 2) * 20 + nt * 4
    o = (slot % 2) * SLOT + jj * 2 * 5120 + nt * 32
    return [f"ds_read_b64_tr_b16 {vr(d,2)}, v{base} offset:{o}",
            f"ds_read_b64_tr_b16 {vr(d+2,2)}, v{base} offset:{o + 1280}"]
def a_reads(j):
    st, jj = divmod(j, 2)
    return [f"ds_read_b128 {vr(XF + (j%2)*8 + sl*4, 4)}, v{V_ARD+sl} offset:{(st % R)*16384 + jj*4096}" for sl in range(2)]

def gen_k3(A, name, text_end_label):
    kernel_begin(A, name)
    A("s_cmp_ge_u32 s2, 256")
    A("s_cbranch_scc1 K3_EXIT")
    stamp_init(A, 2)
    A("s_load_dwordx2 s[12:13], s[0:1], 88")
    A("s_load_dwordx2 s[14:15], s[0:1], 104")
    code_prefetch(A, "K3", text_end_label, 4, V_PF)
    A("s_and_b32 s3, s2, 7")
    A("s_lshr_b32 s4, s2, 3")
    A("s_lshl_b32 s24, s3, 2")
    A("s_lshr_b32 s5, s4, 3")
    A("s_add_u32 s24, s24, s5")
    A("s_and_b32 s25, s4, 7")
    A("v_lshrrev_b32 v5, 6, v0")
    A(f"v_and_b32 v{V_LANE}, 63, v0")
    A("v_readfirstlane_b32 s49, v5")
    A(f"v_and_b32 v2, 15, v0")
    A(f"v_bfe_u32 v3, v0, 4, 2")
    A(f"v_lshlrev_b32 v{V_L16}, 4, v{V_LANE}")
    A("s_and_b32 s26, s49, 3")
    A("s_and_b32 s27, s26, 1")
    A("s_lshr_b32 s44, s26, 1")
    A("s_lshl_b32 s45, s24, 1")
    A("s_add_u32 s45, s45, s27")
    A("s_mul_i32 s52, s26, 5120")
    A("s_cmp_lt_u32 s49, 4")
    A("s_cbranch_scc1 K3_COMPUTE")
    A(f"s_mul_i32 s40, s45, {94*1024}")
    A("s_lshl_b32 s6, s44, 12")
    A("s_add_u32 s40, s40, s6")
    A(f"s_add_u32 s40, s40, {ACT_OFF}")
    A("s_lshl_b32 s53, s27, 13")
    A("s_add_u32 s53, s53, s6")
    A(f"s_add_u32 s53, s53, {AB}")
    A("s_mul_i32 s5, s25, 245760")
    A(f"s_add_u32 s5, s5, {WP_OFF}")
    A("s_waitcnt lgkmcnt(0)")
    A("s_add_u32 s28, s14, s5")
    A("s_addc_u32 s29, s15, 0")
    A("s_mov_b32 s30, 240640")
    A("s_mov_b32 s31, 0x00020000")
    srd(A, 32, 14, WS_BYTES)
    LA = R - 1
    for st in range(LA):
        for s in issue_group(st): A(s)
    stamp(A, 1)
    for st in range(NST):
        hi = min(st - 1 + LA, NST - 1)
        A(f"s_waitcnt vmcnt({(hi - st) * 9})")
        A("s_barrier")
        if st == 0: stamp(A, 2)
        if st + LA < NST:
            for s in issue_group(st + LA): A(s)
    stamp(A, 3)
    A("s_branch K3_END")
    A.label("K3_COMPUTE")
    A(f"v_bfe_u32 v4, v{V_LANE}, 2, 2")
    A(f"v_bfe_u32 v6, v{V_LANE}, 4, 1")
    A("v_lshl_add_u32 v4, v6, 2, v4")
    A(f"v_bfe_u32 v6, v{V_LANE}, 5, 1")
    A("v_lshl_add_u32 v4, v6, 4, v4")
    A(f"v_mul_u32_u24 v{V_TRB}, 160, v4")
    A(f"v_and_b32 v4, 3, v{V_LANE}")
    A(f"v_lshl_add_u32 v{V_TRB}, v4, 3, v{V_TRB}")
    A("s_mul_i32 s5, s44, 5120")
    A(f"v_add_u32 v{V_TRB}, s5, v{V_TRB}")
    A(f"v_add_u32 v{V_TRB+1}, {2*SLOT}, v{V_TRB}")
    A("s_lshl_b32 s5, s27, 13")
    A("s_lshl_b32 s6, s44, 11")
    A("s_add_u32 s5, s5, s6")
    A(f"s_add_u32 s5, s5, {AB}")
    A("v_lshlrev_b32 v4, 9, v3")
    A("v_lshl_add_u32 v4, v2, 4, v4")
    A("s_lshl_b32 s6, s44, 8")
    A("s_add_u32 s7, s5, s6")
    A(f"v_add_u32 v{V_ARD}, s7, v4")
    A("s_xor_b32 s6, s6, 256")
    A("s_add_u32 s7, s5, s6")
    A(f"v_add_u32 v{V_ARD+1}, s7, v4")
    A("s_xor_b32 s5, s26, 2")
    A("s_mul_i32 s5, s5, 5120")
    A(f"v_add_u32 v8, s5, v{V_L16}")
    A(f"v_add_u32 v9, s52, v{V_L16}")
    A("s_lshl_b32 s5, s45, 5")
    A("s_lshl_b32 s6, s44, 4")
    A("s_add_u32 s5, s5, s6")
    A("v_add_u32 v7, s5, v2")
    A("s_movk_i32 s6, 1280")
    A("v_mul_lo_u32 v7, v7, s6")
    A("v_lshl_add_u32 v7, v3, 3, v7")
    A("s_mul_i32 s46, s25, 160")
    A("s_waitcnt lgkmcnt(0)")
    srd(A, 36, 12, 2048 * 1280)
    stamp(A, 1)
    A("s_barrier")
    stamp(A, 2)
    for r in a_reads(0): A(r)
    for nt in range(5):
        for r in tr_reads(0, nt): A(r)
    NJ = 2 * NST
    for j in range(NJ):
        st, jj = divmod(j, 2)
        last = (j == NJ - 1)
        boundary = (jj == 1 and not last)
        if last:
            A("s_cmp_eq_u32 s44, 1")
            A("s_cbranch_scc1 K3_LOOPEND")
        for nt in range(5):
            wf = WF + (j % 2) * 20 + nt * 4
            if boundary or last:
                if nt < 2 or last:
                    A(f"s_waitcnt lgkmcnt({(4-nt)*2})")
            else:
                A(f"s_waitcnt lgkmcnt({8 if nt == 0 else 10})")
            for sl in range(2):
                acc = ACC + sl * 20 + nt * 4
                xb = XF + (j % 2) * 8 + sl * 4
                c = "0" if j == 0 else vr(acc, 4)
                A(f"v_mfma_f32_16x16x32_bf16 {vr(acc,4)}, {vr(wf,4)}, {vr(xb,4)}, {c}")
            if boundary:
                if nt == 1:
                    A("s_waitcnt lgkmcnt(0)")
                    A("s_barrier")
                    for r in a_reads(j + 1): A(r)
                    for m2 in (0, 1):
                        for r in tr_reads(j + 1, m2): A(r)
                elif nt >= 2:
                    for r in tr_reads(j + 1, nt): A(r)
            elif not last:
                if nt == 0:
                    for r in a_reads(j + 1): A(r)
                for r in tr_reads(j + 1, nt): A(r)
    A.label("K3_LOOPEND")
    stamp(A, 3)
    A("s_nop 7")
    for nt in range(5):
        A(f"ds_write_b128 v8, {vr(ACC+20+nt*4,4)} offset:{nt*1024}")
    A("s_waitcnt lgkmcnt(0)")
    A("s_barrier")
    for nt in range(5):
        A(f"ds_read_b128 {vr(RD+nt*4,4)}, v9 offset:{nt*1024}")
    for nt in range(5):
        a = ACC + nt * 4
        A(f"s_waitcnt lgkmcnt({4-nt})")
        A(f"v_pk_add_f32 {vr(a,2)}, {vr(a,2)}, {vr(RD+nt*4,2)}")
        A(f"v_pk_add_f32 {vr(a+2,2)}, {vr(a+2,2)}, {vr(RD+nt*4+2,2)}")
        A(f"v_cvt_pk_bf16_f32 v{a}, v{a}, v{a+1}")
        A(f"v_cvt_pk_bf16_f32 v{a+1}, v{a+2}, v{a+3}")
        A(f"buffer_store_dwordx2 {vr(a,2)}, v7, s[36:39], s46 offen offset:{nt*32}")
    A.label("K3_END")
    endpgm(A)
    A.label("K3_EXIT")
    A("s_endpgm")
```
